```python
import torch

def _softmax(x, axis=-1):
    return torch.softmax(x, dim=axis)

def _gelu(x):
    return torch.nn.functional.gelu(x, approximate='tanh')

def _silu(x):
    return torch.nn.functional.silu(x)

def _sigmoid(x):
    return torch.sigmoid(x)

def _layernorm(x, axis=-1, eps=1e-05):
    m = x.mean(dim=axis, keepdim=True)
    v = x.var(dim=axis, keepdim=True, unbiased=False)
    return (x - m) / torch.sqrt(v + eps)

def _scatter_add(tgt, idx, src, axis=0):
    return tgt.clone().index_add_(axis, idx, src)

def _segment_sum(src, seg, n):
    out = torch.zeros((n,) + src.shape[1:], dtype=src.dtype)
    return out.index_add_(0, seg, src)

def _pad(x, pw):
    flat = tuple((v for pair in reversed(pw) for v in pair))
    return torch.nn.functional.pad(x, flat)
kernel_name = 'concat_heads__memory_aug_recurrent_mem_tr__ssm_conv_s5__prompt'

def setup_inputs():

    _w = lambda a: (lambda t: t.to(torch.bfloat16) if t.is_floating_point() else t)(torch.as_tensor(a))

    def _A_setup():
        B, S, Dm = (1, 2048, 640)
        H, Dh = (32, 192)
        M, seg = (8, 32)
        seg = min(seg, S)
        S = S // seg * seg
        return {'x': _w((lambda *s: torch.randn(*s, dtype=torch.bfloat16) * 0.05)(B, S, Dm)), 'mem0': _w((lambda *s: torch.randn(*s, dtype=torch.bfloat16) * 0.8)(B, M, Dm)), 'Wq': _w((lambda *s: torch.randn(*s, dtype=torch.bfloat16) * 1.6)(Dm, H, Dh) * Dm ** (-0.5)), 'Wk': _w((lambda *s: torch.randn(*s, dtype=torch.bfloat16) * 1.6)(Dm, H, Dh) * Dm ** (-0.5)), 'Wv': _w((lambda *s: torch.randn(*s, dtype=torch.bfloat16) * 0.8)(Dm, H, Dh) * Dm ** (-0.5)), 'Wo': _w((lambda *s: torch.randn(*s, dtype=torch.bfloat16) * 0.8)(H, Dh, Dm) * (H * Dh) ** (-0.5)), 'seg_len': seg}
    _A_in = _A_setup()

    def _B_setup():
        B, S, D = (1, 2048, 640)
        P = D
        Lambda_re = -0.5 * (lambda _x: torch.exp(torch.as_tensor(_x)))((lambda *s: torch.randn(*s, dtype=torch.bfloat16) * 0.8)(P))
        Lambda_im = (lambda *s: torch.randn(*s, dtype=torch.bfloat16) * 0.8)(P) * 1.0
        B_re = (lambda *s: torch.randn(*s, dtype=torch.bfloat16) * 0.8)(P, D) * D ** (-0.5)
        B_im = (lambda *s: torch.randn(*s, dtype=torch.bfloat16) * 0.8)(P, D) * D ** (-0.5)
        C_re = (lambda *s: torch.randn(*s, dtype=torch.bfloat16) * 0.8)(D, P) * P ** (-0.5)
        C_im = (lambda *s: torch.randn(*s, dtype=torch.bfloat16) * 0.8)(D, P) * P ** (-0.5)
        log_dt = (lambda *s: torch.randn(*s, dtype=torch.bfloat16) * 0.8)(P) * 0.3 - 2.0
        Dskip = (lambda *s: torch.randn(*s, dtype=torch.bfloat16) * 0.8)(D)
        return {'x': _w((lambda *s: torch.randn(*s, dtype=torch.bfloat16) * 0.05)(B, S, D)), 'Lambda_re': _w(Lambda_re), 'Lambda_im': _w(Lambda_im), 'B_re': _w(B_re), 'B_im': _w(B_im), 'C_re': _w(C_re), 'C_im': _w(C_im), 'log_dt': _w(log_dt), 'Dskip': _w(Dskip)}
    _B_in = _B_setup()
    return {'A_x': _A_in['x'], 'A_mem0': _A_in['mem0'], 'A_Wq': _A_in['Wq'], 'A_Wk': _A_in['Wk'], 'A_Wv': _A_in['Wv'], 'A_Wo': _A_in['Wo'], 'A_seg_len': _A_in['seg_len'], 'B_x': _B_in['x'], 'B_Lambda_re': _B_in['Lambda_re'], 'B_Lambda_im': _B_in['Lambda_im'], 'B_B_re': _B_in['B_re'], 'B_B_im': _B_in['B_im'], 'B_C_re': _B_in['C_re'], 'B_C_im': _B_in['C_im'], 'B_log_dt': _B_in['log_dt'], 'B_Dskip': _B_in['Dskip']}

def reference(A_x, A_mem0, A_Wq, A_Wk, A_Wv, A_Wo, A_seg_len, B_x, B_Lambda_re, B_Lambda_im, B_B_re, B_B_im, B_C_re, B_C_im, B_log_dt, B_Dskip):

    def _A_ref(x, mem0, Wq, Wk, Wv, Wo, seg_len):
        B, S, Dm = x.shape
        H, Dh = (Wq.shape[1], Wq.shape[2])
        M = mem0.shape[1]
        scale = Dh ** (-0.5)
        n_seg = S // seg_len
        L = M + seg_len
        idx = torch.arange(L)
        mask = (idx[:, None] < M) | (idx[:, None] >= idx[None, :])
        mem = mem0
        outs = []
        for s in range(n_seg):
            xs = x[:, s * seg_len:(s + 1) * seg_len, :].clone()
            h = torch.concatenate([mem, xs], axis=1)
            q = torch.einsum('btd,dhe->bhte', h, Wq)
            k = torch.einsum('btd,dhe->bhte', h, Wk)
            v = torch.einsum('btd,dhe->bhte', h, Wv)
            scores = torch.einsum('bhqe,bhke->bhqk', q, k) * scale
            scores = torch.where(mask[None, None], scores, -1000000000.0)
            p = _softmax(scores, axis=-1)
            o = torch.einsum('bhqk,bhke->bhqe', p, v)
            o = torch.einsum('bhte,hed->btd', o, Wo)
            mem = o[:, :M, :].clone()
            outs.append(o[:, M:, :])
        return torch.concatenate(outs, axis=1)

    def _B_ref(x, Lambda_re, Lambda_im, B_re, B_im, C_re, C_im, log_dt, Dskip):
        Bsz, L, H = x.shape
        Lam = Lambda_re + 1j * Lambda_im
        Bmat = B_re + 1j * B_im
        Cmat = C_re + 1j * C_im
        dt = torch.exp(log_dt)
        Lam_bar = torch.exp(dt * Lam)
        B_bar = ((Lam_bar - 1.0) / Lam)[:, None] * Bmat
        Bu = torch.einsum('bld,pd->blp', x + 0j, B_bar)
        h = torch.zeros_like(Bu[:, 0, :])
        hs = []
        for t in range(L):
            h = Lam_bar[None, :] * h + Bu[:, t, :]
            hs.append(h)
        hseq = torch.stack(hs, 1)
        y = 2.0 * torch.einsum('blp,dp->bld', hseq, Cmat).real + x * Dskip[None, None, :]
        return y
    a = _A_ref(A_x, A_mem0, A_Wq, A_Wk, A_Wv, A_Wo, A_seg_len)
    b = _B_ref(B_x, B_Lambda_re, B_Lambda_im, B_B_re, B_B_im, B_C_re, B_C_im, B_log_dt, B_Dskip)
    return torch.concatenate([a, b], axis=-1)
```

```python
KNAME = "concat_heads__memory_aug_recurrent_mem_tr__ssm_conv_s5__prompt"

class Asm:
    def __init__(self):
        self.lines = []
        self.uid = 0
    def __call__(self, s):
        for ln in s.split("\n"):
            ln = ln.strip()
            if ln:
                self.lines.append(("" if ln.endswith(":") else "    ") + ln)
    def label(self, name):
        self.lines.append(name + ":")
    def newlabel(self, base="L"):
        self.uid += 1
        return f"{base}_{self.uid}"
    def comment(self, s):
        self.lines.append("    ; " + s)
    def text(self):
        return "\n".join(self.lines) + "\n"

def v(i, n=1):
    return f"v{i}" if n == 1 else f"v[{i}:{i+n-1}]"
def a(i, n=1):
    return f"a{i}" if n == 1 else f"a[{i}:{i+n-1}]"
def s(i, n=1):
    return f"s{i}" if n == 1 else f"s[{i}:{i+n-1}]"
def r(i, n=1):
    return v(i, n) if i < 256 else a(i - 256, n)

HEADER = open("cdna_kernels/%s.s.ref" % KNAME).read().split("; Override launch")[0]

def wrap(body, grid, block=256, lds=163840, vgpr=512, accum=256, sgpr=102):
    k = KNAME + "_kernel"
    return (HEADER +
        f"; @launch grid=({grid},1,1) block=({block},1,1) lds={lds}\n"
        '.amdgcn_target "amdgcn-amd-amdhsa--gfx950"\n.text\n'
        f".globl {k}\n.p2align 8\n.type {k},@function\n{k}:\n" + body +
        '.section .rodata,"a"\n.p2align 6\n'
        f".amdhsa_kernel {k}\n"
        f"  .amdhsa_next_free_vgpr {vgpr}\n"
        f"  .amdhsa_next_free_sgpr {sgpr}\n"
        f"  .amdhsa_accum_offset {accum}\n"
        "  .amdhsa_group_segment_fixed_size 0\n"
        "  .amdhsa_kernarg_size 152\n"
        "  .amdhsa_user_sgpr_count 2\n"
        "  .amdhsa_user_sgpr_kernarg_segment_ptr 1\n"
        "  .amdhsa_system_sgpr_workgroup_id_x 1\n"
        "  .amdhsa_float_denorm_mode_32 3\n"
        "  .amdhsa_float_denorm_mode_16_64 3\n"
        ".end_amdhsa_kernel\n")
```

```python
from asmlib import *
import kgen
from kgen import *

SLOT = 128 * 1024
R_MEM, R_PM, R_PX, R_UM = 0, 12 * 1024, 20 * 1024, 44 * 1024
WS_OP = WS_UMG
FL_RED = 104
CEXP = 192 ** -0.5 * 1.4426950408889634
import struct
def f2u(x): return struct.unpack("<I", struct.pack("<f", x))[0]

def chk(A, regs, tmp):
    cur = list(regs); t = tmp
    while len(cur) > 1:
        nxt = []; i = 0
        while i < len(cur):
            grp = cur[i:i+3]
            if len(grp) == 3: A(f"v_max3_u32 v{t}, v{grp[0]}, v{grp[1]}, v{grp[2]}"); nxt.append(t); t += 1
            elif len(grp) == 2: A(f"v_max_u32 v{t}, v{grp[0]}, v{grp[1]}"); nxt.append(t); t += 1
            else: nxt += grp
            i += 3
        cur = nxt
    A(f"v_cmp_eq_u32 vcc, -1, v{cur[0]}")

def poll1(A, name, load, regs, tmp):
    A(f"s_branch {name}\n{name}_r:")
    tick(A)
    A(f"{name}:")
    for i in load: A(i)
    A("s_waitcnt vmcnt(0)")
    chk(A, regs, tmp)
    A(f"s_cbranch_vccnz {name}_r")

def poll2(A, name, loadA, regsA, loadB, regsB, okA, okB, tmp):
    n = len(loadA)
    for i in loadA: A(i)
    A(f"{name}:")
    for i in loadB: A(i)
    A(f"s_waitcnt vmcnt({n})")
    chk(A, regsA, tmp)
    A(f"s_cbranch_vccz {okA}")
    for i in loadA: A(i)
    A(f"s_waitcnt vmcnt({n})")
    chk(A, regsB, tmp)
    A(f"s_cbranch_vccz {okB}")
    A(f"s_sub_u32 s{STO}, s{STO}, 1\ns_cbranch_scc0 {name}\ns_branch L_fail")

def cstamp(A, opt, k):
    if opt.get("cstamp"): A(f"s_memrealtime s[{84+2*k}:{85+2*k}]")
def csave(A, opt, n, vbase, sstep):
    if opt.get("cstamp"):
        A(f"s_waitcnt lgkmcnt(0)\ns_mov_b32 m0, s{sstep}")
        for k in range(n): A(f"v_writelane_b32 v{vbase+k}, s{84+2*k}, m0")
def cdump(A, opt, n, vbase):
    if opt.get("cstamp"):
        A(f"s_lshl_b32 s28, s2, 2\ns_add_u32 s28, s28, s{SW}\ns_lshl_b32 s28, s28, 11\ns_add_u32 s28, s28, {WS_STAMP + MiB}\nv_lshlrev_b32 v3, 2, v1")
        for k in range(n): A(f"buffer_store_dword v{vbase+k}, v3, s[4:7], s28 offen offset:{k*256}")

def slab192_addr(A, vb, shead):
    for j in range(3):
        A(f"""
        v_add_u32 v{vb+j}, {64*j}, v1
        v_mul_u32_u24 v12, 2731, v{vb+j}
        v_lshrrev_b32 v12, 16, v12
        v_mul_u32_u24 v13, 24, v12
        v_sub_u32 v13, v{vb+j}, v13
        v_mul_u32_u24 v12, 12288, v12
        v_lshl_add_u32 v{vb+j}, v13, 4, v12
        """)
    A(f"s_mul_i32 s28, s{shead}, 384\ns_mul_i32 s29, s{SW}, {16*12288}\ns_add_u32 s28, s28, s29")
    for j in range(3): A(f"v_add_u32 v{vb+j}, s28, v{vb+j}")

def slab192_issue(A, vb, srdn, kc, ldsbase):
    for j in range(6):
        A(f"s_add_u32 m0, s30, {ldsbase + j*1024}")
        A(f"s_mov_b32 s31, {(64*kc + 8*(j//3)) * 12288}")
        A(f"buffer_load_dwordx4 v{vb + j%3}, s[{srdn}:{srdn+3}], s31 offen lds")

def main_tr_base(A, vd):
    A(f"""
    v_bfe_u32 v{vd}, v1, 3, 1
    v_lshlrev_b32 v{vd}, 5, v{vd}
    v_bfe_u32 v12, v1, 2, 1
    v_add_u32 v{vd}, v{vd}, v12
    v_lshrrev_b32 v12, 4, v1
    v_lshl_add_u32 v{vd}, v12, 2, v{vd}
    v_mul_u32_u24 v{vd}, 384, v{vd}
    v_and_b32 v12, 3, v1
    v_lshl_add_u32 v{vd}, v12, 3, v{vd}
    """)
UOFF = [0, 2, 16, 18]

def producer_consts(A, MEMB, TB):
    A(f"""
    s_mul_i32 s28, s{SW}, 2560
    v_add_u32 v3, s28, v2
    v_lshlrev_b32 v4, 3, v1
    s_add_u32 s28, s28, 2048
    v_add_u32 v4, s28, v4
    v_add_u32 v5, {MEMB}, v3
    v_add_u32 v6, {MEMB}, v4
    v_bfe_u32 v7, v1, 3, 1
    v_lshlrev_b32 v7, 1, v7
    v_lshrrev_b32 v12, 5, v1
    v_add_u32 v7, v7, v12
    v_lshlrev_b32 v7, 8, v7
    v_and_b32 v12, 7, v1
    v_lshl_add_u32 v7, v12, 5, v7
    v_bfe_u32 v12, v1, 4, 1
    v_lshl_add_u32 v7, v12, 4, v7
    v_add_u32 v7, {MEMB}, v7
    v_and_b32 v8, 15, v1
    v_lshlrev_b32 v8, 3, v8
    v_lshrrev_b32 v12, 5, v1
    v_lshlrev_b32 v12, 6, v12
    v_xor_b32 v8, v8, v12
    v_lshrrev_b32 v12, 4, v1
    v_lshl_add_u32 v8, v12, 7, v8
    v_add_u32 v8, {TB}, v8
    v_lshrrev_b32 v9, 2, v1
    v_lshlrev_b32 v9, 3, v9
    v_bfe_u32 v12, v1, 1, 1
    v_lshlrev_b32 v12, 6, v12
    v_xor_b32 v9, v9, v12
    v_and_b32 v12, 3, v1
    v_lshl_add_u32 v9, v12, 7, v9
    v_add_u32 v9, {TB}, v9
    v_mov_b32 v10, 0x4444
    v_mov_b32 v12, 0xeeee
    v_and_b32 v13, 8, v1
    v_cmp_ne_u32 vcc, 0, v13
    s_nop 1
    v_cndmask_b32 v10, v10, v12, vcc
    """)

def load_mem0(A):
    srd(A, 20, A_MEM0, 10240)
    for i, (src, add) in enumerate(((3, 0), (3, 1024), (4, 0))):
        A(f"""
        v_add_u32 v12, {add}, v{src}
        v_bfe_u32 v13, v12, 5, 3
        v_mul_u32_u24 v13, 1280, v13
        v_lshrrev_b32 v{96+i}, 8, v12
        v_lshl_add_u32 v13, v{96+i}, 5, v13
        v_and_b32 v12, 31, v12
        v_add_u32 v{96+i}, v13, v12
        """)
    A("""
    buffer_load_dwordx4 v[16:19], v96, s[20:23], 0 offen
    buffer_load_dwordx4 v[20:23], v97, s[20:23], 0 offen
    buffer_load_dwordx2 v[24:25], v98, s[20:23], 0 offen
    s_waitcnt vmcnt(0)
    """)

def mem_poll(A, pre, sslot):
    def ld(b): return [f"buffer_load_dwordx4 v[{b}:{b+3}], v3, s[4:7], s{sslot} offen sc1",
                       f"buffer_load_dwordx4 v[{b+4}:{b+7}], v3, s[4:7], s{sslot} offen offset:1024 sc1",
                       f"buffer_load_dwordx2 v[{b+8}:{b+9}], v4, s[4:7], s{sslot} offen sc1"]
    def wr(b): A(f"ds_write_b128 v5, v[{b}:{b+3}]\nds_write_b128 v5, v[{b+4}:{b+7}] offset:1024\nds_write_b64 v6, v[{b+8}:{b+9}]")
    poll1(A, f"{pre}_poll", ld(16), range(16, 26), 40)
    A(f"{pre}_okA:"); wr(16)
    A("s_waitcnt lgkmcnt(0)\ns_barrier")

def slot_advance(A, sstep, sbase, scur, snext:int=None):
    A(f"s_and_b32 s28, s{sstep}, 3\ns_lshl_b32 s28, s28, 17\ns_add_u32 s{scur}, s{sbase}, s28")

def gen_qk(A, opt):
    A("L_qk:")
    WL, MEMB, TB, KX, QX = 0, 81920, 92160, 104448, 116736
    def W(t, kc):
        i = t * 10 + kc
        return 256 + 8 * i if i < 32 else 112 + 8 * (i - 32)
    A(f"s_lshl_b32 s75, s{SGRP}, 3\ns_add_u32 s75, s75, s{SROLE}")
    srd(A, 12, A_WQ, 640 * 12288)
    srd(A, 16, A_WK, 640 * 12288)
    slab192_addr(A, 3, 75)
    main_tr_base(A, 6)
    A(f"s_mul_i32 s28, s{SW}, 96\nv_add_u32 v6, s28, v6\ns_mul_i32 s30, s{SW}, 6144")
    NB = 6
    chunks = [(m, kc) for m in range(2) for kc in range(10)]
    def issue(ci): slab192_issue(A, 3, 12 + 4 * chunks[ci][0], chunks[ci][1], (ci % NB) * 24576)
    for ci in range(NB - 1): issue(ci)
    for ci, (m, kc) in enumerate(chunks):
        rem = min(len(chunks) - 1, ci + NB - 2) - ci
        A(f"s_waitcnt vmcnt({6*rem})\ns_barrier")
        if ci + NB - 1 < len(chunks): issue(ci + NB - 1)
        A(f"v_add_u32 v7, {(ci % NB) * 24576}, v6")
        for t3 in range(3):
            t = 3 * m + t3
            dst = W(t, kc) if t < 5 else 16 + 8 * kc
            for u in range(4):
                A(f"ds_read_b64_tr_b16 {r(dst + 2*u, 2)}, v7 offset:{UOFF[u]*384 + t3*32}")
        A("s_waitcnt lgkmcnt(0)")
    A("s_barrier")
    A(f"s_mul_i32 s28, s{SW}, 20480\nv_add_u32 v11, s28, v2")
    for kc in range(10):
        A(f"ds_write_b128 v11, v[{16+8*kc}:{19+8*kc}] offset:{kc*2048}\nds_write_b128 v11, v[{20+8*kc}:{23+8*kc}] offset:{kc*2048+1024}")
        if kc % 4 == 3: A("s_waitcnt lgkmcnt(0)")
    A("s_waitcnt lgkmcnt(0)")
    stamp(A, opt, 1)
    producer_consts(A, MEMB, TB)
    A(f"s_mul_i32 s28, s{SW}, 1536\nv_add_u32 v8, s28, v8")
    wait_all_started(A, "L_qk_st", 12, 13)
    A(f"s_lshl_b32 s74, s{SGRP}, 19\ns_add_u32 s74, s74, {WS_RING}\ns_mov_b32 s77, 0\ns_mov_b32 s78, 0\ns_mul_i32 s79, s75, 12288")
    A(f"""
    v_lshrrev_b32 v12, 4, v1
    v_and_b32 v13, 1, v12
    v_lshlrev_b32 v13, 1, v13
    v_lshrrev_b32 v15, 1, v12
    v_add_u32 v13, v13, v15
    v_lshlrev_b32 v13, 2, v13
    s_cmp_eq_u32 s{SW}, 0
    s_cbranch_scc0 L_qk_c1
    v_and_b32 v15, 7, v1
    v_lshlrev_b32 v15, 4, v15
    v_lshl_add_u32 v14, v12, 7, v15
    v_bfe_u32 v12, v1, 3, 1
    v_lshl_add_u32 v14, v12, 3, v14
    v_add_u32 v15, v15, v13
    s_lshr_b32 s28, s{SROLE}, 1
    s_mul_i32 s28, s28, 1280
    s_and_b32 s29, s{SROLE}, 1
    s_lshl_b32 s31, s29, 9
    s_add_u32 s31, s31, s28
    s_add_u32 s31, s31, {R_PM}
    v_add_u32 v14, s31, v14
    s_lshl_b32 s31, s29, 7
    s_add_u32 s31, s31, s28
    s_add_u32 s31, s31, {R_PM + 1024}
    v_add_u32 v15, s31, v15
    s_branch L_qk_c3
    L_qk_c1:
    s_cmp_eq_u32 s{SW}, 3
    s_cbranch_scc1 L_qk_c2
    s_sub_u32 s28, s{SW}, 1
    s_mul_i32 s29, s28, 10240
    s_add_u32 s29, s29, {R_PX}
    s_lshl_b32 s31, s{SROLE}, 10
    s_add_u32 s31, s31, s29
    v_add_u32 v14, s31, v2
    v_and_b32 v15, 15, v1
    v_lshl_add_u32 v15, v15, 4, v13
    s_lshl_b32 s31, s{SROLE}, 8
    s_add_u32 s31, s31, s29
    s_add_u32 s31, s31, 8192
    v_add_u32 v15, s31, v15
    v_and_b32 v13, 15, v1
    s_lshl_b32 s28, s28, 4
    v_add_u32 v13, s28, v13
    v_lshlrev_b32 v12, 2, v12
    v_sub_u32 v13, v13, v12
    """)
    for i in range(8):
        A(f"v_cmp_gt_i32 s[{48+2*i}:{49+2*i}], {16*(i>>2) + (i&3)}, v13")
    A(f"""
    s_branch L_qk_c3
    L_qk_c2:
    s_mul_i32 s28, s75, 6
    v_and_b32 v14, 1, v1
    v_mul_u32_u24 v14, 5, v14
    v_add_u32 v14, s28, v14
    v_lshrrev_b32 v14, 3, v14
    v_bfe_u32 v12, v1, 1, 1
    v_mul_u32_u24 v12, 24, v12
    v_add_u32 v14, v14, v12
    v_lshlrev_b32 v14, 7, v14
    v_add_u32 v14, {WS_FLAG}, v14
    L_qk_c3:
    s_mov_b32 s80, {f2u(CEXP)}
    s_mov_b32 s81, 0xf149f2ca
    s_mov_b32 s82, 0x00ff00ff
    s_mov_b32 s83, 0x00ff00ff
    """)
    def prefetch(name):
        A(f"s_cmp_eq_u32 s{SW}, 3\ns_cbranch_scc0 {name}_skip\ns_cmp_ge_u32 s64, 65\ns_cbranch_scc1 {name}_skip")
        wait_progress(A, 78, 64, 14, 12, name + "_w")
        for m, (wsb, lb) in enumerate(((WS_KX, KX), (WS_QX, QX))):
            for i in range(12):
                if i % 4 == 0:
                    A(f"s_mov_b32 m0, {lb + i*1024}\ns_add_u32 s28, s79, {wsb + i*1024}")
                A(f"buffer_load_dwordx4 v2, s[4:7], s28 offen offset:{(i%4)*1024} sc1 lds")
        A(f"s_add_u32 s79, s79, 393216\n{name}_skip:")
    ACC = 56; STG = 80
    def pre_main():
        for i in range(24): A(f"v_mov_b32 v{ACC+i}, 0")
        for kc in range(2):
            A(f"ds_read_b128 v[{STG+8*kc}:{STG+8*kc+3}], v11 offset:{kc*2048}\nds_read_b128 v[{STG+8*kc+4}:{STG+8*kc+7}], v11 offset:{kc*2048+1024}")
    A("s_mov_b32 s64, 1")
    prefetch("L_qk_pf0")
    load_mem0(A)
    pre_main()
    slot_advance(A, 77, 74, 76)
    A("s_branch L_qk_okA")
    A("L_qk_loop:")
    pre_main()
    mem_poll(A, "L_qk", 76)
    for kc in range(10): A(f"ds_read_b128 v[{16+4*kc}:{19+4*kc}], v7 offset:{kc*1024}")
    cstamp(A, opt, 0)
    KXR = [16 + 4 * i for i in range(9)] + [96, 100, 104]
    cs = 2 if opt.get("cstamp") else 0
    A(f"v_add_u32 v12, {KX}, v2")
    kxs = {kc: [kc] + ([9 + kc - 3] if 3 <= kc < 6 else []) for kc in range(9)}
    kxs[9] = []
    for kc in range(10):
        if kc == 0: A(f"s_waitcnt lgkmcnt({0 if cs else 9})")
        if kc == 1: A("s_waitcnt lgkmcnt(11)")
        if kc == 2: A("s_waitcnt lgkmcnt(13)")
        for t in range(6):
            if t == 5:
                if kc >= 2: A(f"s_waitcnt lgkmcnt({len(kxs[kc-1]) + (2 if kc < 9 else 0)})")
                b = v(STG + 8 * (kc & 1), 8)
            else:
                b = r(W(t, kc), 8)
            A(f"v_smfmac_f32_16x16x64_bf16 {v(ACC+4*t,4)}, {v(16+4*kc,4)}, {b}, v10")
        for i in kxs[kc]: A(f"ds_read_b128 {v(KXR[i],4)}, v12 offset:{i*1024}")
        if kc + 2 < 10:
            A(f"ds_read_b128 v[{STG+8*(kc&1)}:{STG+8*(kc&1)+3}], v11 offset:{(kc+2)*2048}\nds_read_b128 v[{STG+8*(kc&1)+4}:{STG+8*(kc&1)+7}], v11 offset:{(kc+2)*2048+1024}")
    A("s_nop 6")
    PKR = 80
    for t in range(6):
        A(f"v_cvt_pk_bf16_f32 v{PKR+2*t}, v{ACC+4*t}, v{ACC+4*t+1}\nv_cvt_pk_bf16_f32 v{PKR+2*t+1}, v{ACC+4*t+2}, v{ACC+4*t+3}")
        A(f"ds_write_b64 v8, v[{PKR+2*t}:{PKR+2*t+1}] offset:{(t//3)*6144 + (t%3)*512}")
    A("s_waitcnt lgkmcnt(0)\ns_barrier")
    cstamp(A, opt, 1)
    if cs: A("s_waitcnt lgkmcnt(0)")
    A(f"s_cmp_eq_u32 s{SW}, 0\ns_cbranch_scc0 L_qk_x")
    QR = [56, 60, 64]; KMR = [68, 72, 76]; S0, S1, SM = 80, 84, 88
    def rd_q(f, xrow):
        if xrow: A(f"ds_read_b128 {v(QR[f%3],4)}, v13 offset:{f*1024}")
        else:
            A(f"ds_read_b64_tr_b16 {v(QR[f%3],2)}, v9 offset:{2*f*512}\nds_read_b64_tr_b16 {v(QR[f%3]+2,2)}, v9 offset:{(2*f+1)*512}")
    def rd_km(f):
        A(f"ds_read_b64_tr_b16 {v(KMR[f%3],2)}, v9 offset:{6144+2*f*512}\nds_read_b64_tr_b16 {v(KMR[f%3]+2,2)}, v9 offset:{6144+(2*f+1)*512}")
    def scores(xrow):
        n = 3 if xrow else 4
        for f in range(3): rd_q(f, xrow); rd_km(f)
        for f in range(6):
            A(f"s_waitcnt lgkmcnt({n*min(2, 5-f)})")
            c0, c1, cm = ("0", "0", "0") if f == 0 else (v(S0,4), v(S1,4), v(SM,4))
            A(f"v_mfma_f32_16x16x32_bf16 {v(SM,4)}, {v(KMR[f%3],4)}, {v(QR[f%3],4)}, {cm}")
            A(f"v_mfma_f32_16x16x32_bf16 {v(S0,4)}, {v(KXR[f],4)}, {v(QR[f%3],4)}, {c0}")
            A(f"v_mfma_f32_16x16x32_bf16 {v(S1,4)}, {v(KXR[6+f],4)}, {v(QR[f%3],4)}, {c1}")
            if f + 3 < 6: rd_q(f + 3, xrow); rd_km(f + 3)
        A("s_nop 5")
        A(f"v_permlane32_swap_b32 v{SM}, v{SM+1}\nv_permlane32_swap_b32 v{SM+2}, v{SM+3}")
        A(f"v_add_f32 v{SM}, v{SM}, v{SM+1}\nv_add_f32 v{SM+1}, v{SM+2}, v{SM+3}")
    def allred_g(x, t, op):
        A(f"v_mov_b32 v{t}, v{x}\ns_nop 1\nv_permlane16_swap_b32 v{x}, v{t}\n{op} v{x}, v{x}, v{t}")
        A(f"v_mov_b32 v{t}, v{x}\ns_nop 1\nv_permlane32_swap_b32 v{x}, v{t}\n{op} v{x}, v{x}, v{t}")
    scores(False)
    X = 92
    for j in range(4):
        A(f"v_add_f32_dpp v{X+j}, v{S0+j}, v{S0+j} row_ror:8 row_mask:0xf bank_mask:0x3")
    for j in range(4):
        A(f"v_add_f32_dpp v{X+j}, v{S1+j}, v{S1+j} row_ror:8 row_mask:0xf bank_mask:0xc")
    A(f"v_add_f32_dpp v96, v{SM}, v{SM} row_ror:8 row_mask:0xf bank_mask:0x3")
    A(f"v_add_f32_dpp v96, v{SM+1}, v{SM+1} row_ror:8 row_mask:0xf bank_mask:0xc")
    A(f"v_max3_f32 v97, v{X}, v{X+1}, v{X+2}\nv_max3_f32 v97, v97, v{X+3}, v96\ns_nop 1")
    A("v_max_f32_dpp v97, v97, v97 row_ror:8 row_mask:0xf bank_mask:0xf")
    allred_g(97, 98, "v_max_f32")
    A("v_mul_f32 v97, s80, v97")
    for j in range(5): A(f"v_fma_f32 v{X+j}, v{X+j}, s80, -v97")
    for j in range(5): A(f"v_exp_f32 v{X+j}, v{X+j}")
    A(f"v_add_f32 v97, v{X}, v{X+1}\nv_add_f32 v98, v{X+2}, v{X+3}\nv_add_f32 v97, v97, v96\nv_add_f32 v97, v97, v98\ns_nop 1")
    A("v_add_f32_dpp v97, v97, v97 row_ror:8 row_mask:0xf bank_mask:0xf")
    allred_g(97, 98, "v_add_f32")
    A("v_rcp_f32 v97, v97\ns_nop 0")
    A("v_mul_f32 v96, v96, v97")
    for j in range(4): A(f"v_mul_f32 v{X+j}, v{X+j}, v97")
    A("v_mov_b32_dpp v98, v96 row_ror:8 row_mask:0xf bank_mask:0xf")
    A(f"v_cvt_pk_bf16_f32 v100, v{X}, v{X+1}\nv_cvt_pk_bf16_f32 v101, v{X+2}, v{X+3}\nv_cvt_pk_bf16_f32 v102, v96, v98")
    A("v_min_u32 v100, -2, v100\nv_min_u32 v101, -2, v101\nv_min_u32 v102, -2, v102")
    A("buffer_store_dwordx2 v[100:101], v14, s[4:7], s76 offen")
    A("s_mov_b64 exec, s[82:83]\nbuffer_store_dword v102, v15, s[4:7], s76 offen\ns_mov_b64 exec, -1")
    cstamp(A, opt, 2)
    A("s_barrier")
    A("s_add_u32 s28, s77, 3\ns_and_b32 s28, s28, 3\ns_lshl_b32 s28, s28, 17\ns_add_u32 s28, s28, s74")
    A("v_mov_b32 v104, -1\nv_mov_b32 v105, -1")
    A("buffer_store_dwordx2 v[104:105], v14, s[4:7], s28 offen\nbuffer_store_dword v104, v15, s[4:7], s28 offen")
    A("s_branch L_qk_next")
    A("L_qk_x:")
    A(f"s_cmp_eq_u32 s{SW}, 3\ns_cbranch_scc1 L_qk_w3")
    A(f"s_mul_i32 s28, s{SW}, 6144\ns_add_u32 s28, s28, {QX - 6144}\nv_add_u32 v13, s28, v2")
    scores(True)
    A("v_mov_b32 v97, s81")
    vals = [S0 + j for j in range(4)] + [S1 + j for j in range(4)]
    for i, x in enumerate(vals): A(f"v_cndmask_b32 v{x}, v{x}, v97, s[{48+2*i}:{49+2*i}]")
    vals += [SM, SM + 1]
    A(f"v_max3_f32 v97, v{vals[0]}, v{vals[1]}, v{vals[2]}")
    for i in (3, 5, 7): A(f"v_max3_f32 v97, v97, v{vals[i]}, v{vals[i+1]}")
    A(f"v_max_f32 v97, v97, v{vals[9]}")
    allred_g(97, 98, "v_max_f32")
    A("v_mul_f32 v97, s80, v97")
    for x in vals: A(f"v_fma_f32 v{x}, v{x}, s80, -v97")
    for x in vals: A(f"v_exp_f32 v{x}, v{x}")
    A(f"s_nop 0\nv_add_f32 v97, v{vals[0]}, v{vals[1]}")
    for x in vals[2:]: A(f"v_add_f32 v97, v97, v{x}")
    allred_g(97, 98, "v_add_f32")
    A("v_rcp_f32 v97, v97\ns_nop 0")
    for x in vals: A(f"v_mul_f32 v{x}, v{x}, v97")
    for i in range(5): A(f"v_cvt_pk_bf16_f32 v{100+i}, v{vals[2*i]}, v{vals[2*i+1]}")
    A("s_barrier")
    A("buffer_store_dwordx4 v[100:103], v14, s[4:7], s76 offen\nbuffer_store_dword v104, v15, s[4:7], s76 offen")
    A("s_branch L_qk_next")
    A("L_qk_w3:\ns_barrier")
    A("s_add_u32 s64, s77, 2")
    prefetch("L_qk_pf")
    A("L_qk_next:")
    csave(A, opt, 3, 108, 77)
    A("s_add_u32 s77, s77, 1")
    slot_advance(A, 77, 74, 76)
    A("s_cmp_lt_u32 s77, 64\ns_cbranch_scc1 L_qk_loop")
    A(f"""
    s_waitcnt vmcnt(0)
    s_barrier
    s_cmp_eq_u32 s{SW}, 0
    s_cbranch_scc0 L_qk_end
    v_mov_b32 v100, 0
    v_mov_b32 v101, 0
    buffer_store_dwordx2 v[100:101], v14, s[4:7], s76 offen
    buffer_store_dword v100, v15, s[4:7], s76 offen
    L_qk_end:
    """)
    cdump(A, opt, 3, 108)
    stamp(A, opt, 2)
    A("s_waitcnt vmcnt(0)\ns_endpgm")

def gen_vo(A, opt):
    A("L_vo:")
    WL, MEMB, TB = 0, 81920, 92160
    def R8(i): return 256 + 8 * i if i < 32 else 112 + 8 * (i - 32)
    def WV(t, kc): return R8(t * 10 + kc)
    def WO(t, k): return R8(30 + 2 * t + k)
    A(f"s_sub_u32 s{SROLE}, s{SROLE}, 8\ns_lshl_b32 s75, s{SGRP}, 3\ns_add_u32 s75, s75, s{SROLE}")
    srd(A, 12, A_WV, 640 * 12288)
    srd(A, 16, A_WO, 6144 * 1280)
    slab192_addr(A, 3, 75)
    main_tr_base(A, 6)
    A(f"s_lshl_b32 s28, s{SW}, 5\ns_add_u32 s29, s28, 256\nv_add_u32 v9, s29, v6\ns_lshl_b32 s28, s{SW}, 6\nv_add_u32 v6, s28, v6\ns_mul_i32 s30, s{SW}, 6144")
    A(f"""
    v_bfe_u32 v8, v1, 3, 2
    v_lshlrev_b32 v8, 3, v8
    v_lshrrev_b32 v12, 5, v1
    v_lshl_add_u32 v8, v12, 2, v8
    v_bfe_u32 v12, v1, 2, 1
    v_add_u32 v8, v8, v12
    v_mul_u32_u24 v8, 1280, v8
    v_and_b32 v12, 3, v1
    v_lshl_add_u32 v8, v12, 3, v8
    s_mul_i32 s28, s{SW}, 320
    v_add_u32 v8, s28, v8
    s_mul_i32 s32, s{SW}, 10240
    s_mul_i32 s33, s75, 245760
    s_mul_i32 s28, s{SW}, {16*1280}
    s_add_u32 s33, s33, s28
    """)
    NB = 4
    chunks = [("v", kc, 0) for kc in range(10)] + [("o", k, hb) for k in range(3) for hb in range(2)]
    cnt = lambda c: 6 if c[0] == "v" else 10
    def issue(ci):
        kind, k, hb = chunks[ci]
        lb = (ci % NB) * 40960
        if kind == "v": slab192_issue(A, 3, 12, k, lb)
        else:
            for i in range(10):
                if i % 4 == 0:
                    A(f"s_add_u32 m0, s32, {lb + i*1024}\ns_add_u32 s31, s33, {(64*k + 8*hb) * 1280 + i*1024}")
                A(f"buffer_load_dwordx4 v2, s[16:19], s31 offen offset:{(i%4)*1024} lds")
    for ci in range(NB - 1): issue(ci)
    for ci, (kind, k, hb) in enumerate(chunks):
        last = min(len(chunks) - 1, ci + NB - 2)
        A(f"s_waitcnt vmcnt({sum(cnt(chunks[j]) for j in range(ci+1, last+1))})\ns_barrier")
        if ci + NB - 1 < len(chunks): issue(ci + NB - 1)
        lb = (ci % NB) * 40960
        if kind == "v":
            A(f"v_add_u32 v7, {lb}, v6\nv_add_u32 v10, {lb}, v9")
            for t in range(3):
                for u in range(4):
                    A(f"ds_read_b64_tr_b16 {r(WV(t,k) + 2*u, 2)}, v{7 if t < 2 else 10} offset:{UOFF[u]*384 + (t*32 if t < 2 else 0)}")
        else:
            A(f"v_add_u32 v7, {lb}, v8")
            for t in range(10):
                dst = WO(t, k) if k < 2 else 16 + 8 * t
                for u1 in range(2):
                    A(f"ds_read_b64_tr_b16 {r(dst + 2*(2*hb+u1), 2)}, v7 offset:{2*u1*1280 + t*32}")
                if t == 5: A("s_waitcnt lgkmcnt(0)")
        A("s_waitcnt lgkmcnt(0)")
    A("s_barrier")
    A(f"s_mul_i32 s28, s{SW}, 20480\nv_add_u32 v11, s28, v2")
    for t in range(10):
        A(f"ds_write_b128 v11, v[{16+8*t}:{19+8*t}] offset:{t*2048}\nds_write_b128 v11, v[{20+8*t}:{23+8*t}] offset:{t*2048+1024}")
        if t % 4 == 3: A("s_waitcnt lgkmcnt(0)")
    A("s_waitcnt lgkmcnt(0)")
    stamp(A, opt, 1)
    producer_consts(A, MEMB, TB)
    A(f"""
    s_lshr_b32 s28, s{SW}, 1
    s_add_u32 s28, s28, 4
    s_lshl_b32 s28, s28, 9
    v_add_u32 v15, s28, v8
    s_lshl_b32 s28, s{SW}, 9
    v_add_u32 v8, s28, v8
    s_and_b32 s28, s{SW}, 1
    s_sub_u32 s82, s28, 1
    s_not_b32 s83, s82
    """)
    A(f"""
    v_lshrrev_b32 v14, 5, v1
    v_lshlrev_b32 v14, 11, v14
    v_and_b32 v12, 15, v1
    v_lshl_add_u32 v14, v12, 4, v14
    v_bfe_u32 v12, v1, 4, 1
    v_lshl_add_u32 v14, v12, 3, v14
    s_mul_i32 s28, s{SW}, 20480
    s_lshl_b32 s29, s{SROLE}, 8
    s_add_u32 s28, s28, s29
    s_add_u32 s28, s28, {R_UM}
    v_add_u32 v14, s28, v14
    """)
    wait_all_started(A, "L_vo_st", 12, 13)
    A(f"s_lshl_b32 s74, s{SGRP}, 19\ns_add_u32 s74, s74, {WS_RING}\ns_mov_b32 s77, 0")
    ACC = 56
    load_mem0(A)
    for i in range(52): A(f"v_mov_b32 v{56+i}, 0")
    slot_advance(A, 77, 74, 76)
    A("s_branch L_vo_okA")
    A("L_vo_loop:")
    A1 = 96
    for i in range(52): A(f"v_mov_b32 v{56+i}, 0")
    mem_poll(A, "L_vo", 76)
    for kc in range(10): A(f"ds_read_b128 v[{16+4*kc}:{19+4*kc}], v7 offset:{kc*1024}")
    cstamp(A, opt, 0)
    def wrd(t): A(f"ds_read_b128 v[{16+8*(t%4)}:{19+8*(t%4)}], v11 offset:{t*2048}\nds_read_b128 v[{20+8*(t%4)}:{23+8*(t%4)}], v11 offset:{t*2048+1024}")
    for kc in range(10):
        if kc <= 6: A(f"s_waitcnt lgkmcnt({0 if (opt.get('cstamp') or kc == 6) else 9-kc})")
        for t in range(3):
            A(f"v_smfmac_f32_16x16x64_bf16 {v(A1+4*t,4)}, {v(16+4*kc,4)}, {r(WV(t,kc),8)}, v10")
        if kc >= 6: wrd(kc - 6)
    A("s_nop 5")
    for j in range(4): A(f"v_mov_b32 v{108+j}, v{A1+8+j}")
    for j in range(4): A(f"v_permlane32_swap_b32 v{A1+j}, v{A1+4+j}")
    for j in range(4): A(f"v_permlane32_swap_b32 v{A1+8+j}, v{108+j}")
    for j in (0, 2): A(f"v_pk_add_f32 {v(A1+j,2)}, {v(A1+j,2)}, {v(A1+4+j,2)}")
    for j in (0, 2): A(f"v_pk_add_f32 {v(A1+8+j,2)}, {v(A1+8+j,2)}, {v(108+j,2)}")
    A(f"v_cvt_pk_bf16_f32 v108, v{A1}, v{A1+1}\nv_cvt_pk_bf16_f32 v109, v{A1+2}, v{A1+3}")
    A(f"v_cvt_pk_bf16_f32 v110, v{A1+8}, v{A1+9}\nv_cvt_pk_bf16_f32 v111, v{A1+10}, v{A1+11}")
    A("ds_write_b64 v8, v[108:109]\ns_mov_b64 exec, s[82:83]\nds_write_b64 v15, v[110:111]\ns_mov_b64 exec, -1")
    A("s_waitcnt lgkmcnt(0)\ns_barrier")
    AF = 96
    for p in range(6): A(f"ds_read_b64_tr_b16 {v(AF+2*p,2)}, v9 offset:{p*512}")
    A("s_waitcnt lgkmcnt(0)")
    def epi(j):
        a0, b0 = ACC + 8 * j, ACC + 8 * j + 4
        L = [f"v_permlane32_swap_b32 v{a0+i}, v{b0+i}" for i in range(4)]
        L += [f"v_pk_add_f32 {v(a0+i,2)}, {v(a0+i,2)}, {v(b0+i,2)}" for i in (0, 2)]
        L += [f"v_cvt_pk_bf16_f32 v{b0}, v{a0}, v{a0+2}", f"v_cvt_pk_bf16_f32 v{b0+1}, v{a0+1}, v{a0+3}",
              f"v_min_u32 v{b0}, -2, v{b0}", f"v_min_u32 v{b0+1}, -2, v{b0+1}",
              f"s_add_u32 s28, s76, {j*4096}",
              f"buffer_store_dwordx2 v[{b0}:{b0+1}], v14, s[4:7], s28 offen"]
        return L
    pend = []
    ready = []
    n = 0
    for j in range(5):
        for k in range(3):
            for h2 in range(2):
                t = 2 * j + h2
                if k == 2:
                    if h2 == 0 and j >= 2: A(f"s_waitcnt lgkmcnt({4 if j < 4 else 0})")
                    b = v(16 + 8 * (t % 4), 8)
                else: b = r(WO(t, k), 8)
                A(f"v_smfmac_f32_16x16x64_bf16 {v(ACC+4*t,4)}, {v(AF+4*k,4)}, {b}, v10")
                n += 1
                while ready and ready[0][0] <= n: pend += ready.pop(0)[1]
                for _ in range(2):
                    if pend: A(pend.pop(0))
        if 2 * j + 4 < 10: wrd(2 * j + 4); wrd(2 * j + 5)
        ready.append((n + 5, epi(j)))
    tail = pend + sum((x[1] for x in ready[:-1]), [])
    for ins in tail: A(ins)
    if len(tail) < 8: A(f"s_nop {7 - len(tail)}")
    for ins in ready[-1][1]: A(ins)
    cstamp(A, opt, 1)
    A("s_barrier")
    csave(A, opt, 2, 12, 77)
    A("s_add_u32 s77, s77, 1")
    slot_advance(A, 77, 74, 76)
    A("s_cmp_lt_u32 s77, 64\ns_cbranch_scc1 L_vo_loop")
    cdump(A, opt, 2, 12)
    stamp(A, opt, 2)
    A("s_waitcnt vmcnt(0)\ns_endpgm")

def gen_red(A, opt):
    A("L_red:")
    PB, PXB = 0, 8192
    A(f"s_sub_u32 s{SROLE}, s{SROLE}, 16\ns_lshl_b32 s75, s{SROLE}, 2\ns_add_u32 s75, s75, s{SW}")
    A(f"s_lshl_b32 s74, s{SGRP}, 19\ns_add_u32 s74, s74, {WS_RING}")
    A(f"""
    s_mul_i32 s28, s{SW}, 1280
    s_add_u32 s28, s28, {R_PM}
    v_add_u32 v3, s28, v2
    v_lshlrev_b32 v4, 2, v1
    s_add_u32 s28, s28, 1024
    v_add_u32 v4, s28, v4
    v_bfe_u32 v5, v1, 3, 2
    v_lshlrev_b32 v5, 4, v5
    v_lshrrev_b32 v12, 5, v1
    v_lshl_add_u32 v5, v12, 3, v5
    v_and_b32 v13, 7, v1
    v_add_u32 v5, v5, v13
    v_lshlrev_b32 v5, 4, v5
    s_lshl_b32 s28, s{SW}, 10
    v_add_u32 v5, s28, v5
    s_lshl_b32 s28, s{SW}, 1
    v_add_u32 v12, s28, v12
    v_and_b32 v6, 3, v12
    v_lshlrev_b32 v6, 4, v6
    v_lshrrev_b32 v12, 2, v12
    v_lshl_add_u32 v6, v12, 3, v6
    v_bfe_u32 v12, v1, 2, 3
    v_add_u32 v6, v6, v12
    v_lshlrev_b32 v6, 4, v6
    v_and_b32 v12, 3, v1
    v_lshl_add_u32 v6, v12, 2, v6
    v_add_u32 v6, 4096, v6
    s_lshl_b32 s28, s75, 11
    s_add_u32 s28, s28, {R_UM}
    v_add_u32 v7, s28, v2
    v_lshlrev_b32 v8, 5, v13
    v_lshrrev_b32 v12, 4, v1
    v_lshl_add_u32 v8, v12, 3, v8
    s_lshl_b32 s28, s75, 8
    v_add_u32 v8, s28, v8
    s_mov_b32 s82, 0x00ff00ff
    s_mov_b32 s83, 0x00ff00ff
    """)
    XW = 4 if opt.get("xbf", 0) else 8
    A(f"""
    v_mul_u32_u24 v13, {XW}, v1
    s_lshr_b32 s28, s75, 2
    s_lshl_b32 s28, s28, 14
    s_and_b32 s29, s75, 3
    s_lshl_b32 s29, s29, 11
    s_add_u32 s28, s28, s29
    s_add_u32 s28, s28, {WS_XR}
    v_add_u32 v13, s28, v13
    v_bfe_u32 v12, v1, 3, 1
    v_lshl_add_u32 v8, v12, 2, v8
    """)
    for d, reg in enumerate((9, 10, 11, 16)):
        A(f"s_add_u32 s29, s{SGRP}, {d}\ns_and_b32 s29, s29, 3\ns_lshl_b32 s29, s29, 9\nv_add_u32 v{reg}, s29, v13")
    A(f"""
    s_lshl_b32 s28, s75, 15
    s_lshl_b32 s29, s{SGRP}, 13
    s_add_u32 s28, s28, s29
    s_add_u32 s28, s28, {WS_UX}
    v_add_u32 v18, s28, v2
    v_add_u32 v19, 4096, v18
    v_and_b32 v20, 7, v1
    s_lshl_b32 s28, s{SGRP}, 3
    v_add_u32 v20, s28, v20
    v_lshlrev_b32 v20, 7, v20
    v_add_u32 v20, {WS_FLAG + FL_PU*128}, v20
    s_mul_i32 s28, s{SGRP}, 10
    s_add_u32 s28, s28, s{SROLE}
    s_lshl_b32 s28, s28, 7
    s_add_u32 s28, s28, {WS_FLAG + FL_RED*128}
    v_mov_b32 v21, s28
    s_mul_i32 s28, s{SGRP}, {64*81920}
    s_lshl_b32 s29, s75, 11
    s_add_u32 s28, s28, s29
    s_add_u32 s28, s28, {WS_OP}
    v_add_u32 v22, s28, v2
    s_mul_i32 s30, s{SW}, 5120
    s_add_u32 s28, s30, {R_PX}
    v_add_u32 v23, s28, v2
    v_add_u32 v24, {PXB}, v2
    v_mov_b32 v28, -1
    v_mov_b32 v29, -1
    v_mov_b32 v30, -1
    v_mov_b32 v31, -1
    """)
    wait_all_started(A, "L_red_st", 12, 13)
    A(f"s_mov_b32 s77, 0\ns_mov_b32 s78, 0\ns_mov_b32 s79, 0\ns_mov_b32 s80, {opt.get('pol', 0) << 13}\ns_mov_b32 s81, 0")
    UX = lambda par, h: 128 + 40 * par + 4 * h
    UM = lambda par, j: 128 + 40 * par + 32 + 4 * j
    if "pol" not in opt:
        A(f"""
        s_or_b32 s28, s75, s{SGRP}
        s_cmp_eq_u32 s28, 0
        s_cbranch_scc0 L_red_polw
        s_mov_b32 s66, -1
        s_mov_b32 s67, -1
        s_mov_b32 s31, 8
        L_red_pm:
        """)
        for p in range(2):
            A(f"""
            v_mov_b32 v84, -1
            v_mov_b32 v85, -1
            s_mov_b32 s29, {(1 << 20) + (p << 13)}
            s_memtime s[92:93]
            s_waitcnt lgkmcnt(0)
            buffer_atomic_swap v84, v9, s[4:7], s29 offen sc0 sc1
            s_waitcnt vmcnt(0)
            s_memtime s[94:95]
            s_waitcnt lgkmcnt(0)
            s_sub_u32 s28, s94, s92
            s_min_u32 s{66+p}, s{66+p}, s28
            """)
        A(f"""
        s_sub_u32 s31, s31, 1
        s_cmp_gt_u32 s31, 0
        s_cbranch_scc1 L_red_pm
        s_cmp_lt_u32 s67, s66
        s_cselect_b32 s28, 2, 1
        v_mov_b32 v12, s28
        v_mov_b32 v13, {DB_POL}
        buffer_store_dword v12, v13, s[8:11], 0 offen sc1
        L_red_polw:
        v_mov_b32 v13, {DB_POL}
        L_red_polp:
        buffer_load_dword v12, v13, s[8:11], 0 offen sc1
        s_waitcnt vmcnt(0)
        v_readfirstlane_b32 s28, v12
        s_nop 3
        s_cmp_lg_u32 s28, 0
        s_cbranch_scc1 L_red_polok
        s_sleep 4
        """)
        tick(A)
        A("""
        s_branch L_red_polp
        L_red_polok:
        s_and_b32 s28, s28, 2
        s_lshl_b32 s80, s28, 12
        """)
    PF = 32
    AC = 52
    def uxload(par, name):
        wait_progress(A, 78, 64, 20, 12, name)
        for h in range(8):
            A(f"buffer_load_dwordx4 {v(UX(par,h),4)}, v{18 + h//4}, s[4:7], s79 offen offset:{(h%4)*1024} sc1")
        A("s_add_u32 s79, s79, 1310720")
    A("s_mov_b32 s64, 1")
    uxload(0, "L_red_u0")
    stamp(A, opt, 1)
    A("L_red_loop:")
    for par in range(3):
        L = f"L_red{par}"
        prv, nxt = (par + 2) % 3, (par + 1) % 3
        slot_advance(A, 77, 74, 76)
        A("s_lshl_b32 s65, s28, 1\ns_add_u32 s65, s65, s80")
        if par == 1: A(f"s_cmp_eq_u32 s77, 64\ns_cbranch_scc1 {L}_p")
        um = UM(par, 0)
        poll1(A, f"{L}_um", [f"buffer_load_dwordx4 {v(um,4)}, v7, s[4:7], s76 offen sc1", f"buffer_load_dwordx4 {v(um+4,4)}, v7, s[4:7], s76 offen offset:1024 sc1"], range(um, um + 8), 60)
        cstamp(A, opt, 4)
        A(f"{L}_p:")
        def pl(b): return [f"buffer_load_dwordx4 v[{b}:{b+3}], v3, s[4:7], s76 offen sc1", f"buffer_load_dword v{b+4}, v4, s[4:7], s76 offen sc1"]
        def pw(b): A(f"ds_write_b128 v5, v[{b}:{b+3}]\nds_write_b32 v6, v{b+4}")
        poll2(A, f"{L}_pp", pl(64), range(64, 69), pl(72), range(72, 77), f"{L}_pA", f"{L}_pB", 60)
        A(f"{L}_pB:"); pw(72); A(f"s_branch {L}_pw")
        A(f"{L}_pA:"); pw(64)
        A(f"{L}_pw:\ns_waitcnt lgkmcnt(0)\ns_barrier")
        A(f"s_cmp_ge_u32 s77, 63\ns_cbranch_scc1 {L}_nored")
        for k in range(5): A(f"ds_read_b128 {v(PF+4*k,4)}, v2 offset:{k*1024}")
        cstamp(A, opt, 0)
        for k in range(5):
            A(f"s_waitcnt lgkmcnt({0 if opt.get('cstamp') else 4-k})")
            ua, ub = (UX(par, 2*k), UX(par, 2*k+1)) if k < 4 else (UM(par, 0), UM(par, 1))
            ca, cb = ("0", "0") if k == 0 else (v(AC,4), v(AC+4,4))
            A(f"v_mfma_f32_16x16x32_bf16 {v(AC,4)}, {v(ua,4)}, {v(PF+4*k,4)}, {ca}")
            A(f"v_mfma_f32_16x16x32_bf16 {v(AC+4,4)}, {v(ub,4)}, {v(PF+4*k,4)}, {cb}")
        A("s_nop 7")
        T = 80
        for j in range(2): A(f"v_add_f32_dpp v{T+j}, v{AC+4+j}, v{AC+j} row_ror:8 row_mask:0xf bank_mask:0x3")
        for j in range(2): A(f"v_add_f32_dpp v{T+j}, v{AC+2+j}, v{AC+6+j} row_ror:8 row_mask:0xf bank_mask:0xc")
        XR = 84
        if opt.get("xbf", 0):
            A(f"v_cvt_pk_bf16_f32 v83, v{T}, v{T+1}\nv_min_u32 v83, -2, v83")
            cstamp(A, opt, 1)
            A("buffer_store_dword v83, v9, s[4:7], s65 offen sc1")
            xl = [f"buffer_load_dword v{XR+d}, v{reg}, s[4:7], s65 offen sc1" for d, reg in enumerate((10, 11, 16))]; nx = 3
        else:
            for j in range(2): A(f"v_min_u32 v{T+j}, -2, v{T+j}")
            cstamp(A, opt, 1)
            A(f"buffer_store_dwordx2 {v(T,2)}, v9, s[4:7], s65 offen sc1")
            xl = [f"buffer_load_dwordx2 {v(XR+2*d,2)}, v{reg}, s[4:7], s65 offen sc1" for d, reg in enumerate((10, 11, 16))]; nx = 6
        A("s_add_u32 s28, s77, 1\ns_and_b32 s28, s28, 3\ns_lshl_b32 s28, s28, 17\ns_add_u32 s28, s28, s74")
        xg = opt.get("xgap", -1)
        if xg < 0: A("s_waitcnt vmcnt(0)")
        else:
            for _ in range(xg): A("s_nop 15")
        poll1(A, f"{L}_x", xl, range(XR, XR + nx), 60)
        if opt.get("xbf", 0):
            for d in range(3): A(f"v_lshlrev_b32 v{90+2*d}, 16, v{XR+d}\nv_and_b32 v{91+2*d}, 0xffff0000, v{XR+d}")
            KP = 90
        else: KP = XR
        A(f"v_pk_add_f32 {v(T,2)}, {v(T,2)}, {v(KP,2)}\nv_pk_add_f32 {v(KP+2,2)}, {v(KP+2,2)}, {v(KP+4,2)}\nv_pk_add_f32 {v(T,2)}, {v(T,2)}, {v(KP+2,2)}")
        A(f"v_cvt_pk_bf16_f32 v82, v{T}, v{T+1}\nv_min_u32 v82, -2, v82")
        cstamp(A, opt, 2)
        A("buffer_store_dword v82, v8, s[4:7], s28 offen")
        A("s_barrier")
        A(f"{L}_nored:")
        A("s_add_u32 s28, s77, 3\ns_and_b32 s28, s28, 3\ns_lshl_b32 s28, s28, 17\ns_add_u32 s28, s28, s74")
        A(f"s_add_u32 m0, s30, {PXB}\ns_nop 0")
        for i in range(4): A(f"buffer_load_dwordx4 v23, s[4:7], s28 offen offset:{i*1024} sc1 lds")
        A(f"s_add_u32 m0, s30, {PXB + 4096}\ns_add_u32 s28, s28, 4096")
        A("buffer_load_dwordx4 v23, s[4:7], s28 offen sc1 lds")
        A(f"s_cmp_ge_u32 s77, 63\ns_cbranch_scc1 {L}_last")
        A("s_add_u32 s64, s77, 2")
        uxload(nxt, f"{L}_u")
        A("buffer_store_dwordx4 v[28:31], v7, s[4:7], s76 offen\nbuffer_store_dwordx4 v[28:31], v7, s[4:7], s76 offen offset:1024")
        A("buffer_store_dword v28, v8, s[4:7], s76 offen")
        A("s_add_u32 s28, s77, 3\ns_and_b32 s28, s28, 3\ns_lshl_b32 s28, s28, 18\ns_add_u32 s28, s28, s80")
        A("buffer_store_dword v28, v9, s[4:7], s28 offen sc1" if opt.get("xbf", 0) else "buffer_store_dwordx2 v[28:29], v9, s[4:7], s28 offen sc1")
        A(f"s_waitcnt vmcnt(12)\ns_branch {L}_xo\n{L}_last:\ns_waitcnt vmcnt(0)\n{L}_xo:\ns_barrier")
        if par == 0: A(f"s_cmp_eq_u32 s77, 0\ns_cbranch_scc1 {L}_noxo")
        A("s_sub_u32 s28, s77, 1")
        publish(A, 21, "s28", 12, f"{L}_pub")
        XF = 32
        O = 96
        seq = [(qt, k) for k in range(10) for qt in range(2)]
        def xr(i): qt, k = seq[i]; A(f"ds_read_b128 {v(XF+4*(i%8),4)}, v24 offset:{qt*10240 + k*1024}")
        for i in range(6): xr(i)
        for i, (qt, k) in enumerate(seq):
            if i + 6 < 20: xr(i + 6)
            A(f"s_waitcnt lgkmcnt({min(6, 19-i)})")
            u = UX(prv, k) if k < 8 else UM(prv, k - 8)
            c = "0" if k == 0 else v(O + 4*qt, 4)
            A(f"v_mfma_f32_16x16x32_bf16 {v(O+4*qt,4)}, {v(u,4)}, {v(XF+4*(i%8),4)}, {c}")
        A("s_nop 7")
        A(f"buffer_store_dwordx4 {v(O,4)}, v22, s[4:7], s81 offen sc1\nbuffer_store_dwordx4 {v(O+4,4)}, v22, s[4:7], s81 offen offset:1024 sc1")
        A("s_add_u32 s81, s81, 81920")
        if par == 1: A("s_cmp_eq_u32 s77, 64\ns_cbranch_scc1 L_red_end")
        if par == 0: A(f"{L}_noxo:")
        cstamp(A, opt, 3)
        csave(A, opt, 5, 120, 77)
        A("s_add_u32 s77, s77, 1")
    A("s_branch L_red_loop")
    A("L_red_end:\ns_waitcnt vmcnt(0)\ns_barrier")
    publish(A, 21, "64", 12, "L_red_pubend")
    cdump(A, opt, 5, 120)
    stamp(A, opt, 2)
    A("s_waitcnt vmcnt(0)\ns_endpgm")

def gen_sum(A, opt):
    A("L_sum:")
    srd(A, 12, OUT, 2048 * 5120)
    A(f"""
    v_and_b32 v3, 3, v1
    v_mul_u32_u24 v3, 10, v3
    v_add_u32 v3, s75, v3
    v_lshlrev_b32 v3, 7, v3
    v_add_u32 v3, {WS_FLAG + FL_RED*128}, v3
    s_lshl_b32 s28, s75, 2
    s_add_u32 s28, s28, s{SW}
    s_lshl_b32 s29, s28, 11
    s_add_u32 s29, s29, {WS_OP}
    v_add_u32 v4, s29, v2
    v_add_u32 v5, {64*81920}, v4
    v_add_u32 v6, {64*81920}, v5
    v_add_u32 v7, {64*81920}, v6
    v_and_b32 v8, 15, v1
    v_mul_u32_u24 v8, 5120, v8
    v_lshrrev_b32 v9, 4, v1
    v_lshl_add_u32 v8, v9, 4, v8
    s_lshl_b32 s28, s28, 6
    v_add_u32 v8, s28, v8
    v_add_u32 v9, {16*5120}, v8
    s_mov_b32 s77, 0
    s_mov_b32 s78, 0
    s_mov_b32 s79, 0
    s_mov_b32 s80, 0
    """)
    wait_all_started(A, "L_sum_st", 12, 13)
    A("L_sum_loop:\ns_add_u32 s64, s77, 1")
    wait_progress(A, 78, 64, 3, 12, "L_sum_w", sleep=2)
    for g in range(4):
        for qt in range(2):
            A(f"buffer_load_dwordx4 {v(16+8*g+4*qt,4)}, v{4+g}, s[4:7], s79 offen offset:{qt*1024} sc1")
    A("s_waitcnt vmcnt(0)")
    for i in range(8):
        A(f"v_add_f32 v{16+i}, v{16+i}, v{24+i}\nv_add_f32 v{32+i}, v{32+i}, v{40+i}\nv_add_f32 v{16+i}, v{16+i}, v{32+i}")
    for i in range(4):
        A(f"v_cvt_pk_bf16_f32 v{24+i}, v{16+2*i}, v{17+2*i}")
    for i in range(4):
        A(f"v_lshlrev_b32 v{16+2*i}, 16, v{24+i}\nv_and_b32 v{17+2*i}, 0xffff0000, v{24+i}")
    A("buffer_store_dwordx4 v[16:19], v8, s[12:15], s80 offen\nbuffer_store_dwordx4 v[20:23], v9, s[12:15], s80 offen")
    A(f"s_add_u32 s79, s79, 81920\ns_add_u32 s80, s80, {32*5120}\ns_add_u32 s77, s77, 1\ns_cmp_lt_u32 s77, 64\ns_cbranch_scc1 L_sum_loop")
    stamp(A, opt, 2)
    A("s_waitcnt vmcnt(0)\ns_endpgm")

def gen_all(A, opt):
    A("L_xo:\ns_endpgm")
    gen_qk(A, opt); gen_vo(A, opt); gen_red(A, opt); gen_sum(A, opt)
```

```python
from asmlib import *
from kgen import *
import struct
def f2u(x): return struct.unpack("<I", struct.pack("<f", x))[0]
DPP = "row_mask:0xf bank_mask:0xf"

def cmul(A, dr, di, ar, ai, br, bi):
    A(f"v_mul_f32 v{dr}, v{ar}, v{br}\nv_mul_f32 v{di}, v{ar}, v{bi}\nv_fma_f32 v{dr}, -v{ai}, v{bi}, v{dr}\nv_fma_f32 v{di}, v{ai}, v{br}, v{di}")

def gen_b1(A, opt):
    A("L_b1:")
    srd(A, 12, B_BRE, 640 * 1280)
    srd(A, 20, B_BIM, 640 * 1280)
    srd(A, 16, B_X, 2048 * 1280)
    A(f"""
    s_lshl_b32 s74, s75, 6
    s_lshr_b32 s28, s{SW}, 1
    s_lshl_b32 s28, s28, 5
    s_add_u32 s74, s74, s28
    s_and_b32 s28, s{SW}, 1
    s_lshl_b32 s28, s28, 2
    s_add_u32 s74, s74, s28
    v_bfe_u32 v3, v1, 2, 2
    v_lshlrev_b32 v3, 3, v3
    v_and_b32 v4, 3, v1
    v_add_u32 v3, v3, v4
    v_add_u32 v3, s74, v3
    v_mul_u32_u24 v3, 1280, v3
    v_lshrrev_b32 v4, 4, v1
    v_lshl_add_u32 v3, v4, 4, v3
    """)
    for ks in range(20):
        A(f"buffer_load_dwordx4 {a(4*ks,4)}, v3, s[12:15], 0 offen offset:{ks*64}")
        A(f"buffer_load_dwordx4 {a(80+4*ks,4)}, v3, s[20:23], 0 offen offset:{ks*64}")
    A(f"""
    v_lshrrev_b32 v5, 3, v1
    v_and_b32 v3, 7, v1
    v_xor_b32 v3, v3, v5
    v_lshlrev_b32 v3, 4, v3
    v_mul_u32_u24 v5, 1280, v5
    v_add_u32 v3, v3, v5
    s_mul_i32 s30, s{SW}, 10240
    v_add_u32 v3, s30, v3
    v_and_b32 v6, 7, v1
    v_xor_b32 v5, v4, v6
    v_lshlrev_b32 v5, 4, v5
    v_lshl_add_u32 v5, v6, 7, v5
    v_bfe_u32 v6, v1, 3, 1
    v_mul_u32_u24 v6, 10240, v6
    v_add_u32 v8, v5, v6
    v_xor_b32 v9, 64, v8
    """)
    def x_issue():
        for i in range(10):
            A(f"s_add_u32 m0, s80, {i * 1024 - i * 128}\ns_nop 0\nbuffer_load_dwordx4 v3, s[16:19], s78 offen offset:{i*128} lds")
    A("s_mov_b32 s78, 0\ns_mov_b32 s80, s30"); x_issue()
    A("s_mov_b32 s78, 40960\ns_add_u32 s80, s30, 40960"); x_issue()
    srd(A, 12, B_LRE, 1280); srd(A, 20, B_LIM, 1280); srd(A, 32, B_LDT, 1280)
    A(f"""
    v_lshlrev_b32 v5, 4, v4
    s_lshl_b32 s28, s74, 1
    v_add_u32 v5, s28, v5
    buffer_load_dwordx2 v[16:17], v5, s[12:15], 0 offen
    buffer_load_dwordx2 v[18:19], v5, s[20:23], 0 offen
    buffer_load_dwordx2 v[20:21], v5, s[32:35], 0 offen
    s_mov_b32 s81, {f2u(1.4426950408889634)}
    s_mov_b32 s82, {f2u(0.15915494309189535)}
    s_waitcnt vmcnt(0)
    """)
    LR, LI, DT = 24, 28, 32
    for base, src in ((LR, 16), (LI, 18), (DT, 20)):
        for j in range(4):
            if j % 2 == 0: A(f"v_lshlrev_b32 v{base+j}, 16, v{src + j//2}")
            else: A(f"v_and_b32 v{base+j}, 0xffff0000, v{src + j//2}")
    CR, CI = 128, 132
    PW = 136
    IJ = 184
    def pw(l, j): return PW + (l * 4 + j) * 3
    A("v_and_b32 v40, 15, v1\nv_cmp_eq_u32 vcc, 0, v40\nv_mov_b32 v41, 0")
    for j in range(4):
        a_, b_ = pw(0, j), pw(0, j) + 1
        A(f"""
        v_mul_f32 v36, s81, v{DT+j}
        v_exp_f32 v36, v36
        s_nop 0
        v_cvt_pk_bf16_f32 v36, v36, v36
        v_lshlrev_b32 v36, 16, v36
        v_mul_f32 v37, v36, v{LR+j}
        v_mul_f32 v38, v36, v{LI+j}
        v_mul_f32 v37, s81, v37
        v_exp_f32 v37, v37
        v_mul_f32 v38, s82, v38
        v_fract_f32 v38, v38
        v_cos_f32 v39, v38
        v_sin_f32 v38, v38
        s_nop 0
        v_mul_f32 v{a_}, v37, v39
        v_mul_f32 v{b_}, v37, v38
        v_add_f32 v36, -1.0, v{a_}
        v_mul_f32 v37, v{LR+j}, v{LR+j}
        v_fma_f32 v37, v{LI+j}, v{LI+j}, v37
        v_rcp_f32 v37, v37
        v_mul_f32 v38, v36, v{LR+j}
        v_fma_f32 v38, v{b_}, v{LI+j}, v38
        v_mul_f32 v39, v{b_}, v{LR+j}
        v_fma_f32 v39, -v36, v{LI+j}, v39
        v_add_f32 v37, v37, v37
        v_mul_f32 v{CR+j}, v38, v37
        v_mul_f32 v{CI+j}, v39, v37
        """)
        for l in range(1, 4):
            cmul(A, pw(l, j), pw(l, j) + 1, pw(l-1, j), pw(l-1, j) + 1, pw(l-1, j), pw(l-1, j) + 1)
        for l in range(4): A(f"v_sub_f32 v{pw(l,j)+2}, 0, v{pw(l,j)+1}")
        for i in range(3): A(f"v_cndmask_b32 v{IJ+3*j+i}, v41, v{pw(0,j)+i}, vcc")
    A(f"""
    s_lshl_b32 s28, s75, 12
    s_lshr_b32 s29, s{SW}, 1
    s_lshl_b32 s29, s29, 11
    s_add_u32 s28, s28, s29
    s_and_b32 s29, s{SW}, 1
    s_lshl_b32 s29, s29, 3
    s_add_u32 s28, s28, s29
    s_add_u32 s28, s28, {WS_HS}
    v_add_u32 v6, s28, v2
    s_lshl_b32 s28, s75, 7
    s_add_u32 s28, s28, {WS_FLAG + FL_B1*128}
    v_mov_b32 v10, s28
    """)
    wait_all_started(A, "L_b1_st", 12, 13)
    stamp(A, opt, 1)
    H = lambda tt: 96 + 8 * tt
    AC = 16; FR = 48; PK = 80
    for i in range(16): A(f"v_mov_b32 v{96+i}, 0")
    A("s_mov_b32 s77, 0\ns_mov_b32 s76, 0\ns_mov_b32 s78, 81920\ns_mov_b32 s79, 81920\ns_mov_b32 s83, 0")
    A("L_b1_loop:")
    A("s_waitcnt vmcnt(14)\ns_barrier")
    A("s_sub_u32 s28, s77, 1\ns_max_i32 s28, s28, 0")
    publish(A, 10, "s28", 13, "L_b1_pub")
    A("s_add_u32 s80, s30, s79\nv_add_u32 v11, s83, v8\nv_add_u32 v12, s83, v9")
    x_issue()
    A(f"s_add_u32 s78, s78, 40960\ns_add_u32 s79, s79, 40960\ns_cmp_eq_u32 s79, {4*40960}\ns_cselect_b32 s79, 0, s79")
    A(f"s_add_u32 s83, s83, 40960\ns_cmp_eq_u32 s83, {4*40960}\ns_cselect_b32 s83, 0, s83")
    def rd(q):
        tt, ks = divmod(q, 20)
        A(f"ds_read_b128 {v(FR + 4*(q%8), 4)}, v{11 + (ks & 1)} offset:{tt*20480 + (ks>>1)*1024}")
    for q in range(6): rd(q)
    for tt in range(2):
        for ks in range(20):
            q = tt * 20 + ks
            if q + 6 < 40: rd(q + 6)
            A(f"s_waitcnt lgkmcnt({min(6, 39-q)})")
            for z in range(2):
                c = "0" if ks == 0 else v(AC + 4*z, 4)
                A(f"v_mfma_f32_16x16x32_bf16 {v(AC+4*z,4)}, {a(80*z+4*ks,4)}, {v(FR+4*(q%8),4)}, {c}")
        A("s_nop 7")
        h, hp = H(tt), H(1 - tt)
        for j in range(4): cmul(A, h + j, h + 4 + j, AC + j, AC + 4 + j, CR + j, CI + j)
        for j in range(4):
            A(f"v_fmac_f32_dpp v{h+j}, v{hp+j}, v{IJ+3*j} row_ror:1 {DPP}")
            A(f"v_fmac_f32_dpp v{h+4+j}, v{hp+4+j}, v{IJ+3*j} row_ror:1 {DPP}")
            A(f"v_fmac_f32_dpp v{h+j}, v{hp+4+j}, v{IJ+3*j+2} row_ror:1 {DPP}")
            A(f"v_fmac_f32_dpp v{h+4+j}, v{hp+j}, v{IJ+3*j+1} row_ror:1 {DPP}")
        for l in range(4):
            sh = f"row_shr:{1 << l} {DPP} bound_ctrl:0"
            A("s_nop 1")
            for j in range(4): A(f"v_mov_b32_dpp v{88+j}, v{h+j} {sh}")
            for j in range(4): A(f"v_fmac_f32_dpp v{h+j}, v{h+4+j}, v{pw(l,j)+2} {sh}")
            for j in range(4): A(f"v_fmac_f32_dpp v{h+4+j}, v{h+4+j}, v{pw(l,j)} {sh}")
            for j in range(4): A(f"v_fmac_f32 v{h+j}, v{88+j}, v{pw(l,j)}")
            for j in range(4): A(f"v_fmac_f32 v{h+4+j}, v{88+j}, v{pw(l,j)+1}")
        pk = PK + 4 * tt
        A(f"v_cvt_pk_bf16_f32 v{pk}, v{h}, v{h+1}\nv_cvt_pk_bf16_f32 v{pk+1}, v{h+2}, v{h+3}")
        A(f"v_cvt_pk_bf16_f32 v{pk+2}, -v{h+4}, -v{h+5}\nv_cvt_pk_bf16_f32 v{pk+3}, -v{h+6}, -v{h+7}")
        A(f"buffer_store_dwordx2 {v(pk,2)}, v6, s[4:7], s76 offen sc1\nbuffer_store_dwordx2 {v(pk+2,2)}, v6, s[4:7], s76 offen offset:1024 sc1")
        A("s_add_u32 s76, s76, 40960")
    A("s_add_u32 s77, s77, 1\ns_cmp_lt_u32 s77, 64\ns_cbranch_scc1 L_b1_loop")
    A("s_waitcnt vmcnt(0)\ns_barrier")
    publish(A, 10, "64", 13, "L_b1_pube")
    stamp(A, opt, 2)
    A("s_waitcnt vmcnt(0)\ns_endpgm")

def gen_b2(A, opt):
    A("L_b2:")
    A("s_cmp_ge_u32 s75, 5\ns_cselect_b32 s79, 1, 0\ns_mul_i32 s28, s79, 5\ns_sub_u32 s74, s75, s28")
    srd(A, 12, B_CRE, 640 * 1280)
    srd(A, 20, B_CIM, 640 * 1280)
    srd(A, 16, B_X, 2048 * 1280)
    srd(A, 32, OUT, 2048 * 5120)
    def W(t, k):
        i = (t * 10 + k) * 4
        return 256 + i if i < 256 else 192 + (i - 256)
    A(f"""
    v_bfe_u32 v3, v1, 2, 2
    v_lshlrev_b32 v3, 3, v3
    v_and_b32 v4, 3, v1
    v_add_u32 v3, v3, v4
    v_mul_u32_u24 v3, 1280, v3
    v_lshrrev_b32 v4, 4, v1
    v_lshl_add_u32 v3, v4, 4, v3
    s_mul_i32 s28, s74, {128*1280}
    s_mul_i32 s29, s{SW}, 320
    s_add_u32 s28, s28, s29
    v_add_u32 v3, s28, v3
    """)
    n = 0
    for t in range(8):
        A(f"s_mov_b32 s31, {(32*(t>>1) + 4*(t&1)) * 1280}")
        for k in range(10):
            A(f"buffer_load_dwordx4 {r(W(t,k),4)}, v3, s[{12 + 8*(k&1)}:{15 + 8*(k&1)}], s31 offen offset:{(k>>1)*64}")
        if t % 4 == 3: A("s_waitcnt vmcnt(20)")
    srd(A, 12, B_DSK, 1280)
    A(f"""
    s_waitcnt vmcnt(0)
    s_lshl_b32 s28, s74, 7
    s_lshl_b32 s29, s{SW}, 5
    s_add_u32 s28, s28, s29
    v_lshlrev_b32 v5, 3, v4
    v_add_u32 v5, s28, v5
    v_lshlrev_b32 v6, 1, v5
    buffer_load_dwordx4 v[16:19], v6, s[12:15], 0 offen
    v_and_b32 v7, 15, v1
    v_mul_u32_u24 v8, 1280, v7
    v_add_u32 v8, v8, v6
    v_mul_u32_u24 v9, 5120, v7
    v_lshl_add_u32 v9, v5, 2, v9
    v_add_u32 v9, 2560, v9
    s_mul_i32 s28, s{SW}, 10240
    s_add_u32 s28, s28, {WS_HS}
    v_add_u32 v3, s28, v2
    v_add_u32 v4, 4096, v3
    v_add_u32 v5, 8192, v3
    v_min_u32 v10, 9, v1
    v_lshlrev_b32 v10, 7, v10
    v_add_u32 v10, {WS_FLAG + FL_B1*128}, v10
    s_lshl_b32 s28, s{SW}, 13
    v_add_u32 v6, s28, v2
    s_lshl_b32 s28, s{SW}, 11
    v_add_u32 v7, s28, v2
    s_waitcnt vmcnt(0)
    """)
    DS = 176
    for j in range(8):
        if j % 2 == 0: A(f"v_lshlrev_b32 v{DS+j}, 16, v{16 + j//2}")
        else: A(f"v_and_b32 v{DS+j}, 0xffff0000, v{16 + j//2}")
    wait_all_started(A, "L_b2_st", 12, 13)
    stamp(A, opt, 1)
    HF = 16
    XV = 96
    AC = 104
    RD = 136
    A("s_mov_b32 s77, s79\ns_mov_b32 s78, 0")
    A("L_b2_loop:\ns_add_u32 s64, s77, 1")
    wait_progress(A, 78, 64, 10, 12, "L_b2_w", sleep=2)
    A(f"s_mul_i32 s76, s77, 81920\ns_mul_i32 s80, s77, {32*1280}\ns_mul_i32 s81, s77, {32*5120}")
    for tt in range(2):
        for k in range(10):
            A(f"buffer_load_dwordx4 {v(HF+40*tt+4*k,4)}, v{3 + k//4}, s[4:7], s76 offen offset:{(k%4)*1024} sc1")
        A(f"buffer_load_dwordx4 {v(XV+4*tt,4)}, v8, s[16:19], s80 offen")
        if tt == 0: A(f"s_add_u32 s76, s76, 40960\ns_add_u32 s80, s80, {16*1280}")
    for tt in range(2):
        for k in range(10):
            A(f"s_waitcnt vmcnt({(10-k) + (11 if tt == 0 else 2)})")
            for t in range(8):
                c = "0" if k == 0 else v(AC + 4*t, 4)
                A(f"v_mfma_f32_16x16x32_bf16 {v(AC+4*t,4)}, {r(W(t,k),4)}, {v(HF+40*tt+4*k,4)}, {c}")
        A("s_nop 1")
        lb = tt * 32768
        for t in range(8):
            if t == 7: A("s_nop 1")
            A(f"ds_write_b128 v6, {v(AC+4*t,4)} offset:{lb + t*1024}")
        A("s_waitcnt lgkmcnt(0)\ns_barrier")
        for w2 in range(4):
            for h2 in range(2):
                A(f"ds_read_b128 {v(RD+8*w2+4*h2,4)}, v7 offset:{lb + w2*8192 + h2*1024}")
        A(f"s_waitcnt vmcnt({11 if tt == 0 else 2})")
        for j in range(8):
            if j % 2 == 0: A(f"v_lshlrev_b32 v{168+j}, 16, v{XV+4*tt + j//2}")
            else: A(f"v_and_b32 v{168+j}, 0xffff0000, v{XV+4*tt + j//2}")
        for j in range(8): A(f"v_mul_f32 v{168+j}, v{168+j}, v{DS+j}")
        for j in range(4): A(f"v_cvt_pk_bf16_f32 v{184+j}, v{168+2*j}, v{169+2*j}")
        for j in range(8):
            if j % 2 == 0: A(f"v_lshlrev_b32 v{168+j}, 16, v{184 + j//2}")
            else: A(f"v_and_b32 v{168+j}, 0xffff0000, v{184 + j//2}")
        A("s_waitcnt lgkmcnt(0)")
        for j in range(8):
            A(f"v_add_f32 v{RD+j}, v{RD+j}, v{RD+8+j}\nv_add_f32 v{RD+16+j}, v{RD+16+j}, v{RD+24+j}")
        for j in range(8):
            A(f"v_add_f32 v{RD+j}, v{RD+j}, v{RD+16+j}\nv_add_f32 v{RD+j}, v{RD+j}, v{168+j}")
        A(f"buffer_store_dwordx4 {v(RD,4)}, v9, s[32:35], s81 offen\nbuffer_store_dwordx4 {v(RD+4,4)}, v9, s[32:35], s81 offen offset:16")
        if tt == 0: A(f"s_add_u32 s81, s81, {16*5120}")
    A("s_add_u32 s77, s77, 2\ns_cmp_lt_u32 s77, 64\ns_cbranch_scc1 L_b2_loop")
    stamp(A, opt, 2)
    A("s_waitcnt vmcnt(0)\ns_endpgm")

def gen_all(A, opt):
    A(f"""
    L_ssm:
    s_sub_u32 s75, s{SROLE}, 26
    s_lshl_b32 s75, s75, 2
    s_add_u32 s75, s75, s{SGRP}
    s_cmp_lt_u32 s75, 10
    s_cbranch_scc1 L_b1
    s_sub_u32 s75, s75, 10
    s_branch L_b2
    """)
    gen_b1(A, opt); gen_b2(A, opt)
```

```python
import sys
from asmlib import *

MiB = 1 << 20
WS_QX, WS_KX, WS_VX = 0, 24 * MiB, 48 * MiB
WS_UX = 72 * MiB
WS_UMG = 152 * MiB
WS_PX = 172 * MiB
WS_HS = 178 * MiB
WS_FLAG = 183 * MiB + 512 * 1024
WS_RING = 184 * MiB
WS_XR = 186 * MiB
ARM_BYTES = 4 * MiB
FL_PROJ, FL_PU, FL_QK, FL_VO, FL_B1 = 0, 72, 104, 136, 168
WS_STAMP = 250 * MiB
DB_POL = 20
DB_ERR = 24
N_PROJ, N_PU, N_B1, N_B2 = 72, 32, 10, 10
N_BULK = N_PROJ + N_PU + N_B1 + N_B2
TIMEOUT = 400000

def P(i): return 36 + 2 * i
(A_X, A_MEM0, A_WQ, A_WK, A_WV, A_WO, A_SEG, B_X, B_LRE, B_LIM, B_BRE, B_BIM, B_CRE, B_CIM, B_LDT, B_DSK, OUT, DBG, WS) = range(19)
SW, SROLE, SGRP, STO = 24, 25, 26, 27

def srd(A, d, p, nbytes):
    A(f"s_mov_b32 s{d}, s{P(p)}\ns_mov_b32 s{d+1}, s{P(p)+1}\ns_mov_b32 s{d+2}, {nbytes}\ns_mov_b32 s{d+3}, 0x20000")

def tick(A):
    A(f"s_sub_u32 s{STO}, s{STO}, 1\ns_cbranch_scc1 L_fail")

def wave_min_u32(A, x):
    for ctl in ("row_shr:1 row_mask:0xf", "row_shr:2 row_mask:0xf", "row_shr:4 row_mask:0xf", "row_shr:8 row_mask:0xf",
                "row_bcast:15 row_mask:0xa", "row_bcast:31 row_mask:0xc"):
        A("s_nop 1")
        A(f"v_min_u32_dpp v{x}, v{x}, v{x} {ctl} bank_mask:0xf")

def wait_progress(A, savail, sneed, vaddr, vtmp, name, sleep=0):
    A(f"s_cmp_ge_u32 s{savail}, s{sneed}\ns_cbranch_scc1 {name}_ok")
    A(f"{name}:")
    A(f"buffer_load_dword v{vtmp}, v{vaddr}, s[4:7], 0 offen sc1\ns_waitcnt vmcnt(0)")
    wave_min_u32(A, vtmp)
    A(f"s_nop 0\nv_readlane_b32 s{savail}, v{vtmp}, 63\ns_nop 3")
    A(f"s_cmp_ge_u32 s{savail}, s{sneed}\ns_cbranch_scc1 {name}_ok")
    if sleep: A(f"s_sleep {sleep}")
    tick(A)
    A(f"s_branch {name}")
    A(f"{name}_ok:")

def wait_all_started(A, name, va, vb):
    A(f"""
    v_and_b32 v{va}, 3, v1
    v_lshlrev_b32 v{va}, 2, v{va}
    v_bfe_u32 v{vb}, v1, 2, 1
    v_lshl_add_u32 v{va}, v{vb}, 7, v{va}
    {name}:
    buffer_load_dword v{vb}, v{va}, s[8:11], 0 offen sc1
    s_waitcnt vmcnt(0)
    v_cmp_gt_u32 vcc, 32, v{vb}
    s_cbranch_vccz {name}_ok
    s_sleep 4
    """)
    tick(A)
    A(f"s_branch {name}\n{name}_ok:")

def publish(A, vaddr, sval, vtmp, name):
    A(f"""
    s_cmp_eq_u32 s{SW}, 0
    s_cbranch_scc0 {name}
    v_mov_b32 v{vtmp}, {sval}
    s_mov_b64 exec, 1
    buffer_store_dword v{vtmp}, v{vaddr}, s[4:7], 0 offen sc1
    s_mov_b64 exec, -1
    {name}:
    """)

def stamp(A, opt, k):
    if not opt.get("stamp"): return
    A(f"""
    s_memrealtime s[96:97]
    s_memtime s[98:99]
    s_lshl_b32 s100, s2, 8
    s_add_u32 s100, s100, {WS_STAMP + 8*k}
    s_waitcnt lgkmcnt(0)
    v_mov_b32 v14, s96
    v_mov_b32 v15, s98
    s_mov_b64 exec, 1
    buffer_store_dwordx2 v[14:15], off, s[4:7], s100
    s_mov_b64 exec, -1
    """)

def prologue(A, opt):
    A(f"""
    s_cmp_ge_u32 s2, 256
    s_cbranch_scc1 L_exit
    s_load_dwordx16 s[36:51], s[0:1], 0
    s_load_dwordx16 s[52:67], s[0:1], 64
    s_load_dwordx4 s[68:71], s[0:1], 128
    s_load_dwordx2 s[72:73], s[0:1], 144
    s_getreg_b32 s{SGRP}, hwreg(HW_REG_XCC_ID)
    s_and_b32 s{SGRP}, s{SGRP}, 7
    v_and_b32 v1, 63, v0
    v_lshrrev_b32 v3, 6, v0
    v_lshlrev_b32 v2, 4, v1
    v_readfirstlane_b32 s{SW}, v3
    s_mov_b32 s{STO}, {TIMEOUT}
    s_waitcnt lgkmcnt(0)
    """)
    srd(A, 4, WS, 0x10000000)
    srd(A, 8, DBG, 256)
    A(f"""
    v_mov_b32 v8, -1
    v_mov_b32 v9, -1
    v_mov_b32 v10, -1
    v_mov_b32 v11, -1
    v_lshlrev_b32 v4, 4, v0
    s_lshl_b32 s28, s2, 14
    s_add_u32 s28, s28, {WS_RING}
    buffer_store_dwordx4 v[8:11], v4, s[4:7], s28 offen sc1
    s_add_u32 s28, s28, 4096
    buffer_store_dwordx4 v[8:11], v4, s[4:7], s28 offen sc1
    s_add_u32 s28, s28, 4096
    buffer_store_dwordx4 v[8:11], v4, s[4:7], s28 offen sc1
    s_add_u32 s28, s28, 4096
    buffer_store_dwordx4 v[8:11], v4, s[4:7], s28 offen sc1
    s_lshl_b32 s28, s2, 7
    s_add_u32 s28, s28, {WS_FLAG}
    v_mov_b32 v5, 0
    v_and_b32 v4, 31, v0
    v_lshlrev_b32 v4, 2, v4
    buffer_store_dword v5, v4, s[4:7], s28 offen sc1
    s_waitcnt vmcnt(0)
    s_barrier
    """)
    A(f"""
    s_and_b32 s28, s{SGRP}, 3
    s_lshl_b32 s28, s28, 2
    s_lshr_b32 s29, s{SGRP}, 2
    s_lshl_b32 s29, s29, 7
    s_add_u32 s28, s28, s29
    v_mov_b32 v4, s28
    v_mov_b32 v5, 1
    v_mov_b32 v3, 0
    v_cmp_eq_u32 vcc, 0, v0
    s_and_saveexec_b64 s[28:29], vcc
    s_cbranch_execz L_notick
    buffer_atomic_add v5, v4, s[8:11], 0 offen sc0
    s_waitcnt vmcnt(0)
    ds_write_b32 v3, v5
    s_waitcnt lgkmcnt(0)
    L_notick:
    s_mov_b64 exec, s[28:29]
    s_barrier
    ds_read_b32 v5, v3
    s_waitcnt lgkmcnt(0)
    v_readfirstlane_b32 s{SROLE}, v5
    s_barrier
    """)
    if opt.get("stamp"):
        stamp(A, opt, 0)
        A(f"""
        s_lshl_b32 s100, s2, 8
        s_add_u32 s100, s100, {WS_STAMP + 248}
        v_mov_b32 v14, s{SGRP}
        v_mov_b32 v15, s{SROLE}
        s_mov_b64 exec, 1
        buffer_store_dwordx2 v[14:15], off, s[4:7], s100
        s_mov_b64 exec, -1
        """)
    A(f"""
    s_cmp_lt_u32 s{SGRP}, 4
    s_cbranch_scc1 L_chainside
    s_sub_u32 s{SGRP}, s{SGRP}, 4
    s_cmp_lt_u32 s{SROLE}, 18
    s_cbranch_scc1 L_proj
    s_cmp_lt_u32 s{SROLE}, 26
    s_cbranch_scc1 L_pu
    s_cmp_lt_u32 s{SROLE}, 31
    s_cbranch_scc1 L_ssm
    s_branch L_spare
    L_chainside:
    s_cmp_lt_u32 s{SROLE}, 8
    s_cbranch_scc1 L_qk
    s_cmp_lt_u32 s{SROLE}, 16
    s_cbranch_scc1 L_vo
    s_cmp_lt_u32 s{SROLE}, 26
    s_cbranch_scc1 L_red
    s_sub_u32 s75, s{SROLE}, 26
    s_lshl_b32 s75, s75, 2
    s_add_u32 s75, s75, s{SGRP}
    s_cmp_lt_u32 s75, 10
    s_cbranch_scc1 L_sum
    """)
    A("L_spare:")
    wait_all_started(A, "L_spare_w", 4, 5)
    A("s_endpgm")

def epilogue(A):
    A(f"""
    L_fail:
    s_mov_b64 exec, 1
    v_mov_b32 v4, {DB_ERR}
    v_mov_b32 v5, 1
    buffer_atomic_add v5, v4, s[8:11], 0 offen
    s_waitcnt vmcnt(0)
    L_exit:
    s_endpgm
    """)

def gen_proj(A, opt):
    A("L_proj:")
    if not opt.get("proj", 1):
        A("s_endpgm"); return
    A(f"""
    s_mul_i32 s75, s{SGRP}, 6
    s_add_u32 s75, s75, s{SROLE}
    s_mov_b32 s74, {WS_VX}
    s_add_u32 s83, s75, 48
    s_mov_b32 s12, s{P(A_WV)}
    s_mov_b32 s13, s{P(A_WV)+1}
    s_cmp_lt_u32 s{SROLE}, 6
    s_cbranch_scc1 L_proj_m
    s_mov_b32 s74, {WS_KX}
    s_sub_u32 s75, s75, 6
    s_add_u32 s83, s75, 24
    s_mov_b32 s12, s{P(A_WK)}
    s_mov_b32 s13, s{P(A_WK)+1}
    s_cmp_lt_u32 s{SROLE}, 12
    s_cbranch_scc1 L_proj_m
    s_mov_b32 s74, {WS_QX}
    s_sub_u32 s75, s75, 6
    s_mov_b32 s83, s75
    s_mov_b32 s12, s{P(A_WQ)}
    s_mov_b32 s13, s{P(A_WQ)+1}
    L_proj_m:
    s_mov_b32 s14, {640*6144*2}
    s_mov_b32 s15, 0x20000
    """)
    srd(A, 16, A_X, 2048 * 1280)
    def W(t, ks):
        i = (t * 20 + ks) * 4
        return 256 + i if i < 256 else 192 + (i - 256)
    A(f"""
    v_lshrrev_b32 v3, 5, v1
    v_mul_u32_u24 v3, 12288, v3
    v_and_b32 v4, 31, v1
    v_lshl_add_u32 v3, v4, 4, v3
    s_lshl_b32 s28, s75, 9
    s_mul_i32 s29, s{SW}, {16*12288}
    s_add_u32 s28, s28, s29
    v_add_u32 v3, s28, v3
    """)
    A(f"""
    v_lshrrev_b32 v4, 4, v1
    v_lshlrev_b32 v4, 3, v4
    v_bfe_u32 v5, v1, 2, 2
    v_add_u32 v4, v4, v5
    v_lshlrev_b32 v4, 9, v4
    v_and_b32 v5, 3, v1
    v_lshl_add_u32 v4, v5, 3, v4
    s_lshl_b32 s28, s{SW}, 7
    v_add_u32 v4, s28, v4
    v_add_u32 v5, 0x10000, v4
    s_lshl_b32 s30, s{SW}, 13
    """)
    def w_issue(c):
        for i in range(8):
            A(f"s_add_u32 m0, s30, {(c % 4) * 32768 + i * 1024}")
            A(f"s_mov_b32 s31, {(c * 64 + 2 * i) * 12288}")
            A(f"buffer_load_dwordx4 v3, s[12:15], s31 offen lds")
    for c in range(3): w_issue(c)
    for c in range(10):
        rem = min(9, c + 2) - c
        A(f"s_waitcnt vmcnt({8*rem})\ns_barrier")
        if c + 3 < 10: w_issue(c + 3)
        base = (c % 4) * 32768
        vb, boff = (4, base) if base < 65536 else (5, base - 65536)
        for k2 in range(2):
            for t in range(4):
                for u in range(2):
                    A(f"ds_read_b64_tr_b16 {r(W(t, 2*c+k2) + 2*u, 2)}, v{vb} offset:{boff + (32*k2 + 4*u) * 512 + t * 32}")
            A("s_waitcnt lgkmcnt(0)")
    A("s_barrier")
    stamp(A, opt, 1)
    A(f"""
    v_lshrrev_b32 v4, 3, v1
    v_and_b32 v3, 7, v1
    v_xor_b32 v3, v3, v4
    v_lshlrev_b32 v3, 4, v3
    v_mul_u32_u24 v4, 1280, v4
    v_add_u32 v3, v3, v4
    s_mul_i32 s30, s{SW}, 10240
    v_add_u32 v3, s30, v3
    """)
    A(f"""
    v_and_b32 v4, 7, v1
    v_lshrrev_b32 v5, 4, v1
    v_xor_b32 v5, v5, v4
    v_lshlrev_b32 v5, 4, v5
    v_lshl_add_u32 v5, v4, 7, v5
    v_bfe_u32 v4, v1, 3, 1
    v_mul_u32_u24 v4, 10240, v4
    v_add_u32 v88, v5, v4
    v_xor_b32 v89, 64, v88
    """)
    for j in range(2):
        A(f"""
        s_lshl_b32 s28, s75, 3
        s_lshl_b32 s29, s{SW}, 1
        s_add_u32 s28, s28, s29
        s_add_u32 s28, s28, {j}
        s_mul_i32 s29, s28, 43691
        s_lshr_b32 s29, s29, 18
        s_mul_i32 s31, s29, 6
        s_sub_u32 s28, s28, s31
        s_mul_i32 s29, s29, 12288
        s_lshl_b32 s28, s28, 10
        s_add_u32 s28, s28, s29
        s_add_u32 s28, s28, s74
        v_add_u32 v{6+j}, s28, v2
        v_add_u32 v{8+j}, 6144, v{6+j}
        """)
    A(f"s_lshl_b32 s28, s83, 7\ns_add_u32 s28, s28, {WS_FLAG}\nv_mov_b32 v10, s28")
    wait_all_started(A, "L_proj_st", 4, 5)
    ACC = 16
    FR = 48
    PK = 80
    def acc(tt, t): return ACC + (tt * 4 + t) * 4
    def x_issue_one(i):
        A(f"s_add_u32 m0, s80, {i * 1024 - i * 128}")
        A("s_nop 0")
        A(f"buffer_load_dwordx4 v3, s[16:19], s78 offen offset:{i*128} lds")
    def rd(q, nxt):
        tt, ks = divmod(q, 20)
        base = (90 if nxt else 11) + (ks & 1)
        return f"ds_read_b128 {v(FR + 4*(q%8), 4)}, v{base} offset:{tt*20480 + (ks>>1)*1024}"
    A("s_mov_b32 s77, 0\ns_mov_b32 s78, 0\ns_mov_b32 s80, s30\ns_mov_b32 s76, 0")
    for i in range(10): x_issue_one(i)
    A("s_mov_b32 s78, 40960\ns_add_u32 s80, s30, 40960")
    for i in range(10): x_issue_one(i)
    A("s_mov_b32 s78, 81920\ns_mov_b32 s79, 81920\ns_add_u32 s80, s30, 81920\ns_mov_b32 s82, 40960")
    A("v_mov_b32 v11, v88\nv_mov_b32 v12, v89\nv_add_u32 v90, 40960, v88\nv_add_u32 v91, 40960, v89")
    A("s_waitcnt vmcnt(10)\ns_barrier")
    PRE = 6
    for q in range(PRE): A(rd(q, False))
    def epi(tt, vaddr0, soff):
        L = []
        for j in range(2):
            for h2 in range(2):
                t = 2 * j + h2
                L.append(f"v_cvt_pk_bf16_f32 v{PK+4*j+2*h2}, v{acc(tt,t)}, v{acc(tt,t)+1}")
                L.append(f"v_cvt_pk_bf16_f32 v{PK+4*j+2*h2+1}, v{acc(tt,t)+2}, v{acc(tt,t)+3}")
            L.append(f"buffer_store_dwordx4 {v(PK+4*j,4)}, v{vaddr0+j}, s[4:7], {soff} offen {'' if opt.get('plainst') else 'sc1'}")
        return L
    e1 = epi(1, 8, "s81")
    A("s_mov_b32 s81, 0")
    A("L_proj_loop:")
    fill = {}
    def put(slot, ins): fill.setdefault(slot, []).append(ins)
    for i, ins in enumerate(e1): put(9 + i, ins)
    for i, ins in enumerate(epi(0, 6, "s76")): put(89 + i, ins)
    dma_slots = [22, 34, 46, 58, 70, 82, 102, 112, 122, 132]
    for q in range(40):
        tt, ks = divmod(q, 20)
        qn = q + PRE
        if qn == 40:
            A("s_waitcnt vmcnt(12)\ns_barrier")
        A(rd(qn % 40, qn >= 40))
        A(f"s_waitcnt lgkmcnt({PRE})")
        for t in range(4):
            c = "0" if ks == 0 else v(acc(tt, t), 4)
            A(f"v_mfma_f32_16x16x32_bf16 {v(acc(tt,t),4)}, {r(W(t,ks),4)}, {v(FR+4*(q%8),4)}, {c}")
            slot = 4 * q + t
            for ins in fill.get(slot, []): A(ins)
            if slot in dma_slots and not opt.get('nodma'): x_issue_one(dma_slots.index(slot))
            if slot == 141 and not opt.get('nopub'):
                publish(A, 10, "s77", 13, "L_proj_nopub")
            if slot == 145: A("s_mov_b32 s81, s76\ns_add_u32 s76, s76, 393216")
            if slot == 146: A("s_add_u32 s78, s78, 40960\ns_add_u32 s79, s79, 40960")
            if slot == 147: A(f"s_cmp_eq_u32 s79, {4*40960}\ns_cselect_b32 s79, 0, s79")
            if slot == 149: A(f"s_add_u32 s80, s30, s79\ns_add_u32 s82, s82, 40960")
            if slot == 150: A(f"s_cmp_eq_u32 s82, {4*40960}\ns_cselect_b32 s82, 0, s82")
            if slot == 157: A("v_mov_b32 v11, v90\nv_mov_b32 v12, v91")
            if slot == 158: A("v_add_u32 v90, s82, v88\nv_add_u32 v91, s82, v89")
    A(f"""
    s_add_u32 s77, s77, 1
    s_cmp_lt_u32 s77, 64
    s_cbranch_scc1 L_proj_loop
    s_nop 7
    s_nop 3
    """)
    for ins in e1: A(ins)
    A(f"""
    s_waitcnt vmcnt(0) lgkmcnt(0)
    s_barrier
    """)
    publish(A, 10, "64", 13, "L_proj_done")
    stamp(A, opt, 2)
    A("s_branch L_xo")

def gen_pu(A, opt):
    A("L_pu:")
    if not opt.get("pu", 1):
        A("s_endpgm"); return
    A(f"s_lshl_b32 s75, s{SGRP}, 3\ns_add_u32 s75, s75, s{SROLE}\ns_sub_u32 s75, s75, 18")
    srd(A, 12, A_WO, 6144 * 1280)
    def W(t, f): return 256 + (t * 6 + f) * 4
    A(f"""
    s_mul_i32 s30, s{SW}, 10240
    v_add_u32 v3, s30, v2
    s_mul_i32 s74, s75, 245760
    v_lshrrev_b32 v4, 4, v1
    v_lshlrev_b32 v4, 2, v4
    v_bfe_u32 v5, v1, 2, 2
    v_add_u32 v4, v4, v5
    v_mul_u32_u24 v4, 1280, v4
    v_and_b32 v5, 3, v1
    v_lshl_add_u32 v4, v5, 3, v4
    s_mul_i32 s28, s{SW}, 320
    v_add_u32 v4, s28, v4
    """)
    def w_issue(f):
        for i in range(10):
            if i % 4 == 0:
                A(f"s_add_u32 m0, s30, {(f % 4) * 40960 + i * 1024}")
                A(f"s_add_u32 s31, s74, {f * 40960 + i * 1024}")
            A(f"buffer_load_dwordx4 v3, s[12:15], s31 offen offset:{(i%4)*1024} lds")
    for f in range(3): w_issue(f)
    for f in range(6):
        rem = min(5, f + 2) - f
        A(f"s_waitcnt vmcnt({10*rem})\ns_barrier")
        if f + 3 < 6: w_issue(f + 3)
        A(f"v_add_u32 v5, {(f % 4) * 40960}, v4")
        for t in range(10):
            for u in range(2):
                A(f"ds_read_b64_tr_b16 {r(W(t, f) + 2*u, 2)}, v5 offset:{16*u*1280 + t*32}")
            if t % 4 == 3 or t == 9: A("s_waitcnt lgkmcnt(0)")
    stamp(A, opt, 1)
    A(f"""
    s_mul_i32 s28, s75, 12288
    s_add_u32 s28, s28, {WS_VX}
    v_add_u32 v6, s28, v2
    v_add_u32 v7, 4096, v6
    v_add_u32 v8, 8192, v6
    s_lshl_b32 s28, s75, 10
    s_mul_i32 s29, s{SW}, 327680
    s_add_u32 s28, s28, s29
    v_add_u32 v9, s28, v2
    s_lshl_b32 s28, s75, 7
    s_add_u32 s28, s28, {WS_FLAG + FL_PU*128}
    v_mov_b32 v10, s28
    """)
    wait_all_started(A, "L_pu_st", 4, 5)
    A(f"""
    s_mul_i32 s28, s75, 6
    v_and_b32 v11, 1, v1
    v_mul_u32_u24 v11, 5, v11
    v_add_u32 v11, s28, v11
    v_lshrrev_b32 v11, 3, v11
    v_lshlrev_b32 v11, 7, v11
    v_add_u32 v11, {WS_FLAG + 48*128}, v11
    s_mov_b32 s77, 0
    s_mov_b32 s76, 0
    s_mov_b32 s78, {WS_UX}
    s_mov_b32 s79, 0
    """)
    VB = 32
    AC = 128
    PK = 144
    def vload(par):
        for q in range(12):
            A(f"buffer_load_dwordx4 {v(VB+48*par+4*q,4)}, v{6+q//4}, s[4:7], s76 offen offset:{(q%4)*1024} sc1")
        A("s_add_u32 s76, s76, 393216")
    def epi(t):
        a0 = AC + (t % 2) * 8; pk = PK + (t % 2) * 4
        return [f"v_cvt_pk_bf16_f32 v{pk}, v{a0}, v{a0+1}", f"v_cvt_pk_bf16_f32 v{pk+1}, v{a0+2}, v{a0+3}",
                f"v_cvt_pk_bf16_f32 v{pk+2}, v{a0+4}, v{a0+5}", f"v_cvt_pk_bf16_f32 v{pk+3}, v{a0+6}, v{a0+7}",
                f"s_add_u32 s81, s78, {t*32768}",
                f"buffer_store_dwordx4 {v(pk,4)}, v9, s[4:7], s81 offen sc1"]
    A("s_mov_b32 s80, 1")
    wait_progress(A, 79, 80, 11, 12, "L_pu_w0")
    vload(0)
    A("s_waitcnt vmcnt(0)")
    A("L_pu_loop:")
    for par in range(2):
        A(f"s_add_u32 s80, s77, 2\ns_min_u32 s80, s80, 64\ns_mov_b32 s82, 0\ns_cmp_ge_u32 s79, s80\ns_cbranch_scc0 L_pu_nopf{par}\ns_mov_b32 s82, 1")
        vload(1 - par)
        A(f"L_pu_nopf{par}:")
        for t in range(10):
            a0 = AC + (t % 2) * 8
            pend = epi(t - 1) if t > 0 else []
            n = 0
            for f in range(6):
                for tt in range(2):
                    c = "0" if f == 0 else v(a0 + 4*tt, 4)
                    A(f"v_mfma_f32_16x16x32_bf16 {v(a0+4*tt,4)}, {v(VB+48*par+4*(tt*6+f),4)}, {r(W(t,f),4)}, {c}")
                    n += 1
                    if n >= 8:
                        for _ in range(2):
                            if pend: A(pend.pop(0))
        A("s_nop 7\ns_nop 3")
        for ins in epi(9): A(ins)
        A(f"buffer_load_dword v12, v11, s[4:7], 0 offen sc1")
        A(f"""
        s_add_u32 s78, s78, 1310720
        s_add_u32 s77, s77, 1
        s_waitcnt vmcnt(0)
        s_barrier
        """)
        publish(A, 10, "s77", 13, f"L_pu_nopub{par}")
        A(f"""
        v_readlane_b32 s28, v12, 0
        v_readlane_b32 s29, v12, 1
        s_nop 3
        s_min_u32 s79, s28, s29
        s_cmp_eq_u32 s82, 1
        s_cbranch_scc1 L_pu_have{par}
        """)
        wait_progress(A, 79, 80, 11, 12, f"L_pu_w{par+1}")
        vload(1 - par)
        A("s_waitcnt vmcnt(0)")
        A(f"L_pu_have{par}:")
    A("s_cmp_lt_u32 s77, 64\ns_cbranch_scc1 L_pu_loop")
    stamp(A, opt, 2)
    A("s_waitcnt vmcnt(0)\ns_endpgm")

def stub(A, name):
    A(f"{name}:\ns_endpgm")

def build(opt):
    import kchain
    A = Asm()
    prologue(A, opt)
    gen_proj(A, opt)
    gen_pu(A, opt)
    kchain.gen_all(A, opt)
    try:
        import kssm
        kssm.gen_all(A, opt)
    except ImportError:
        stub(A, "L_ssm")
    epilogue(A)
    return wrap(A.text(), 256)

if __name__ == "__main__":
    out = sys.argv[1] if len(sys.argv) > 1 else "k.s"
    opt = {}
    for a_ in sys.argv[2:]:
        k_, v_ = a_.split("="); opt[k_] = int(v_)
    open(out, "w").write(build(opt))
```

```python
from asmlib import *
import kgen
from kgen import *

SLOT = 128 * 1024
R_MEM, R_PM, R_PX, R_UM = 0, 12 * 1024, 20 * 1024, 44 * 1024
WS_OP = WS_UMG
FL_RED = 104
CEXP = 192 ** -0.5 * 1.4426950408889634
import struct
def f2u(x): return struct.unpack("<I", struct.pack("<f", x))[0]

def chk(A, regs, tmp):
    cur = list(regs); t = tmp
    while len(cur) > 1:
        nxt = []; i = 0
        while i < len(cur):
            grp = cur[i:i+3]
            if len(grp) == 3: A(f"v_max3_u32 v{t}, v{grp[0]}, v{grp[1]}, v{grp[2]}"); nxt.append(t); t += 1
            elif len(grp) == 2: A(f"v_max_u32 v{t}, v{grp[0]}, v{grp[1]}"); nxt.append(t); t += 1
            else: nxt += grp
            i += 3
        cur = nxt
    A(f"v_cmp_eq_u32 vcc, -1, v{cur[0]}")

def poll1(A, name, load, regs, tmp):
    A(f"s_branch {name}\n{name}_r:")
    tick(A)
    A(f"{name}:")
    for i in load: A(i)
    A("s_waitcnt vmcnt(0)")
    chk(A, regs, tmp)
    A(f"s_cbranch_vccnz {name}_r")

def poll2(A, name, loadA, regsA, loadB, regsB, okA, okB, tmp):
    n = len(loadA)
    for i in loadA: A(i)
    A(f"{name}:")
    for i in loadB: A(i)
    A(f"s_waitcnt vmcnt({n})")
    chk(A, regsA, tmp)
    A(f"s_cbranch_vccz {okA}")
    for i in loadA: A(i)
    A(f"s_waitcnt vmcnt({n})")
    chk(A, regsB, tmp)
    A(f"s_cbranch_vccz {okB}")
    A(f"s_sub_u32 s{STO}, s{STO}, 1\ns_cbranch_scc0 {name}\ns_branch L_fail")

def cstamp(A, opt, k):
    if opt.get("cstamp"): A(f"{'s_memtime' if opt['cstamp'] == 2 else 's_memrealtime'} s[{84+2*k}:{85+2*k}]")
def csave(A, opt, n, vtmp, sstep):
    if opt.get("cstamp"):
        A(f"s_lshl_b32 s28, s2, 2\ns_add_u32 s28, s28, s{SW}\ns_lshl_b32 s28, s28, 11\ns_lshl_b32 s29, s{sstep}, 2\ns_add_u32 s28, s28, s29\ns_add_u32 s28, s28, {WS_STAMP + MiB}")
        A("s_waitcnt lgkmcnt(0)\ns_mov_b64 exec, 1")
        for k in range(n): A(f"v_mov_b32 v{vtmp}, s{84+2*k}\nbuffer_store_dword v{vtmp}, off, s[4:7], s28 offset:{k*256}")
        A(f"v_mov_b32 v{vtmp}, s95\nbuffer_store_dword v{vtmp}, off, s[4:7], s28 offset:1792")
        A("s_mov_b64 exec, -1")
def cdump(A, opt, n, vbase): pass

def slab192_addr(A, vb, shead):
    for j in range(3):
        A(f"""
        v_add_u32 v{vb+j}, {64*j}, v1
        v_mul_u32_u24 v12, 2731, v{vb+j}
        v_lshrrev_b32 v12, 16, v12
        v_mul_u32_u24 v13, 24, v12
        v_sub_u32 v13, v{vb+j}, v13
        v_mul_u32_u24 v12, 12288, v12
        v_lshl_add_u32 v{vb+j}, v13, 4, v12
        """)
    A(f"s_mul_i32 s28, s{shead}, 384\ns_mul_i32 s29, s{SW}, {16*12288}\ns_add_u32 s28, s28, s29")
    for j in range(3): A(f"v_add_u32 v{vb+j}, s28, v{vb+j}")

def slab192_issue(A, vb, srdn, kc, ldsbase):
    for j in range(6):
        A(f"s_add_u32 m0, s30, {ldsbase + j*1024}")
        A(f"s_mov_b32 s31, {(64*kc + 8*(j//3)) * 12288}")
        A(f"buffer_load_dwordx4 v{vb + j%3}, s[{srdn}:{srdn+3}], s31 offen lds")

def main_tr_base(A, vd):
    A(f"""
    v_and_b32 v{vd}, 8, v1
    v_bfe_u32 v12, v1, 2, 1
    v_add_u32 v{vd}, v{vd}, v12
    v_lshrrev_b32 v12, 5, v1
    v_lshl_add_u32 v{vd}, v12, 4, v{vd}
    v_bfe_u32 v12, v1, 4, 1
    v_lshl_add_u32 v{vd}, v12, 2, v{vd}
    v_mul_u32_u24 v{vd}, 384, v{vd}
    v_and_b32 v12, 3, v1
    v_lshl_add_u32 v{vd}, v12, 3, v{vd}
    """)
UOFF = [0, 2, 32, 34]

def producer_consts(A, MEMB, TB):
    A(f"""
    v_add_u32 v3, 4096, v2
    v_add_u32 v4, 8192, v2
    v_and_b32 v8, 15, v1
    v_lshlrev_b32 v8, 3, v8
    v_lshrrev_b32 v12, 5, v1
    v_lshlrev_b32 v12, 6, v12
    v_xor_b32 v8, v8, v12
    v_lshrrev_b32 v12, 4, v1
    v_lshl_add_u32 v8, v12, 7, v8
    v_add_u32 v8, {TB}, v8
    v_lshrrev_b32 v9, 2, v1
    v_lshlrev_b32 v9, 3, v9
    v_bfe_u32 v12, v1, 1, 1
    v_lshlrev_b32 v12, 6, v12
    v_xor_b32 v9, v9, v12
    v_and_b32 v12, 3, v1
    v_lshl_add_u32 v9, v12, 7, v9
    v_add_u32 v9, {TB}, v9
    v_mov_b32 v10, 0x4444
    v_mov_b32 v12, 0xeeee
    v_and_b32 v13, 8, v1
    v_cmp_ne_u32 vcc, 0, v13
    s_nop 1
    v_cndmask_b32 v10, v10, v12, vcc
    """)

def aload(kc, sslot):
    return f"buffer_load_dwordx4 v[{16+4*kc}:{19+4*kc}], v{2 + kc//4}, s[4:7], s{sslot} offen offset:{(kc%4)*1024} sc1"

class Track:
    def __init__(self): self.ops = []
    def add(self, tag): self.ops.append(tag)
    def after(self, tag):
        i = max(j for j, t in enumerate(self.ops) if t == tag)
        return len(self.ops) - 1 - i

def main_stream(A, opt, pre, sslot, ntile, first, emit_mm, group_fill, tmp, lds, spacer, tail=None):
    roll = opt.get("roll", 0)
    if roll:
        h = len(spacer) // 2
        A(aload(0, sslot))
        for x in spacer[:h]: A(x)
        A(aload(1, sslot))
        for x in spacer[h:]: A(x)
        A(aload(2, sslot))
        A(f"{pre}_poll:")
        for j in range(3):
            b = 16 + 4 * j
            A(f"s_waitcnt vmcnt(2)\nv_max3_u32 v{tmp}, v{b}, v{b+1}, v{b+2}\nv_max_u32 v{tmp}, v{tmp}, v{b+3}\nv_cmp_eq_u32 vcc, -1, v{tmp}\ns_cbranch_vccz {pre}_e{j}")
            A(aload(j, sslot))
        A(f"s_sub_u32 s{STO}, s{STO}, 1\ns_cbranch_scc0 {pre}_poll\ns_branch L_fail")
    else:
        for x in spacer: A(x)
        poll1(A, f"{pre}_poll", [aload(k, sslot) for k in range(3)], range(16, 28), 44)
    retry = []
    c0, c1, c2 = (1, 2, 3) if ntile == 6 else (0, 0, 1)
    def groups(seq, nxt_of, vm, issued, q, tag):
        for kc in seq:
            nk = nxt_of(kc)
            need = nk is not None
            b = 16 + 4 * nk if need else 0
            for t in range(ntile):
                emit_mm(kc, t)
                room = 2
                if (t == 2 if opt.get('jit') else t % 3 == 2) and issued < 10: A(aload(issued, sslot)); vm.add(issued); issued += 1; room -= 1
                if need and t == c0: A(f"s_waitcnt vmcnt({vm.after(nk)})"); room -= 1
                if ntile == 6 and t == 4: room -= 1
                if need and t == ntile - 1: room -= 1
                while q and room > 0:
                    ins, tg = q.pop(0); A(ins); lds.add(tg); room -= 1
                if need:
                    if t == c0: A(f"v_max3_u32 v{tmp}, v{b}, v{b+1}, v{b+2}")
                    if t == c1: A(f"v_max_u32 v{tmp}, v{tmp}, v{b+3}")
                    if t == c2: A(f"v_cmp_eq_u32 vcc, -1, v{tmp}")
            if kc >= 3: q += group_fill(kc)
            if need:
                A(f"s_cbranch_vccnz {pre}_rt{tag}{nk}\n{pre}_bk{tag}{nk}:")
                retry.append((f"{tag}{nk}", nk))
        return issued
    for j in ((2, 1, 0) if roll else (0,)):
        order = [j, (j + 1) % 3, (j + 2) % 3]
        A(f"{pre}_e{j}:")
        vm = Track(); vm.add(order[1]); vm.add(order[2])
        issued = 3
        for _ in range(first): A(aload(issued, sslot)); vm.add(issued); issued += 1
        cstamp(A, opt, 0)
        issued = groups(order, (lambda kc: (order + [3])[order.index(kc) + 1]) if roll else (lambda kc: 3 if kc == 2 else None), vm, issued, [], f"v{j}_")
        if j: A(f"s_branch {pre}_g3")
    A(f"{pre}_g3:")
    q = group_fill(2)
    if tail is None:
        groups(range(3, 10), lambda kc: kc + 1 if kc < 9 else None, vm, issued, q, "")
    else:
        groups(range(3, 7), lambda kc: kc + 1, vm, issued, q, "")
        tail(q, retry)
    for ins, tg in q: A(ins); lds.add(tg)
    return retry

def main_retries(A, pre, sslot, retry, tmp):
    for tag, nk in retry:
        b = 16 + 4 * nk
        A(f"{pre}_rt{tag}:")
        A("s_add_u32 s95, s95, 1")
        tick(A)
        A(aload(nk, sslot) + "\ns_waitcnt vmcnt(0)")
        A(f"v_max3_u32 v{tmp}, v{b}, v{b+1}, v{b+2}\nv_max_u32 v{tmp}, v{tmp}, v{b+3}\nv_cmp_eq_u32 vcc, -1, v{tmp}")
        A(f"s_cbranch_vccnz {pre}_rt{tag}\ns_branch {pre}_bk{tag}")

def slot_advance(A, sstep, sbase, scur, snext:int=None):
    A(f"s_and_b32 s28, s{sstep}, 3\ns_lshl_b32 s28, s28, 17\ns_add_u32 s{scur}, s{sbase}, s28")

def gen_qk(A, opt):
    A("L_qk:")
    WL, MEMB, TB, KX, QX = 0, 0, 81920, 94208, 106496
    def W(t, kc):
        i = t * 10 + kc
        return 256 + 8 * i if i < 32 else 112 + 8 * (i - 32)
    A(f"s_lshl_b32 s75, s{SGRP}, 3\ns_add_u32 s75, s75, s{SROLE}")
    srd(A, 12, A_WQ, 640 * 12288)
    srd(A, 16, A_WK, 640 * 12288)
    slab192_addr(A, 3, 75)
    main_tr_base(A, 6)
    A(f"s_mul_i32 s28, s{SW}, 96\nv_add_u32 v6, s28, v6\ns_mul_i32 s30, s{SW}, 6144")
    NB = 6
    chunks = [(m, kc) for kc in range(10) for m in (1, 0)]
    def issue(ci): slab192_issue(A, 3, 12 + 4 * chunks[ci][0], chunks[ci][1], (ci % NB) * 24576)
    for ci in range(NB - 1): issue(ci)
    for ci, (m, kc) in enumerate(chunks):
        rem = min(len(chunks) - 1, ci + NB - 2) - ci
        A(f"s_waitcnt vmcnt({6*rem})\ns_barrier")
        if ci + NB - 1 < len(chunks): issue(ci + NB - 1)
        A(f"v_add_u32 v7, {(ci % NB) * 24576}, v6")
        for t3 in range(3):
            t = 3 * m + t3
            dst = W(t, kc) if t < 5 else 16 + 8 * kc
            for u in range(4):
                A(f"ds_read_b64_tr_b16 {r(dst + 2*u, 2)}, v7 offset:{UOFF[u]*384 + t3*32}")
        A("s_waitcnt lgkmcnt(0)")
    A("s_barrier")
    A(f"s_mul_i32 s28, s{SW}, 20480\nv_add_u32 v11, s28, v2")
    for kc in range(10):
        A(f"ds_write_b128 v11, v[{16+8*kc}:{19+8*kc}] offset:{kc*2048}\nds_write_b128 v11, v[{20+8*kc}:{23+8*kc}] offset:{kc*2048+1024}")
        if kc % 4 == 3: A("s_waitcnt lgkmcnt(0)")
    A("s_waitcnt lgkmcnt(0)")
    stamp(A, opt, 1)
    producer_consts(A, MEMB, TB)
    A(f"s_mul_i32 s28, s{SW}, 1536\nv_add_u32 v8, s28, v8")
    wait_all_started(A, "L_qk_st", 12, 13)
    A(f"s_lshl_b32 s74, s{SGRP}, 19\ns_add_u32 s74, s74, {WS_RING}\ns_mov_b32 s77, 0\ns_mov_b32 s78, 0\ns_mul_i32 s79, s75, 12288")
    A(f"""
    v_lshrrev_b32 v12, 4, v1
    v_and_b32 v13, 1, v12
    v_lshlrev_b32 v13, 1, v13
    v_lshrrev_b32 v15, 1, v12
    v_add_u32 v13, v13, v15
    v_lshlrev_b32 v13, 2, v13
    s_cmp_eq_u32 s{SW}, 0
    s_cbranch_scc0 L_qk_c1
    v_and_b32 v15, 7, v1
    v_lshlrev_b32 v15, 4, v15
    v_lshl_add_u32 v14, v12, 7, v15
    v_bfe_u32 v12, v1, 3, 1
    v_lshl_add_u32 v14, v12, 3, v14
    v_add_u32 v15, v15, v13
    s_lshr_b32 s28, s{SROLE}, 1
    s_mul_i32 s28, s28, 1280
    s_and_b32 s29, s{SROLE}, 1
    s_lshl_b32 s31, s29, 9
    s_add_u32 s31, s31, s28
    s_add_u32 s31, s31, {R_PM}
    v_add_u32 v14, s31, v14
    s_lshl_b32 s31, s29, 7
    s_add_u32 s31, s31, s28
    s_add_u32 s31, s31, {R_PM + 1024}
    v_add_u32 v15, s31, v15
    s_branch L_qk_c3
    L_qk_c1:
    s_cmp_eq_u32 s{SW}, 3
    s_cbranch_scc1 L_qk_c2
    s_sub_u32 s28, s{SW}, 1
    s_mul_i32 s29, s28, 10240
    s_add_u32 s29, s29, {R_PX}
    s_lshl_b32 s31, s{SROLE}, 10
    s_add_u32 s31, s31, s29
    v_add_u32 v14, s31, v2
    v_and_b32 v15, 15, v1
    v_lshl_add_u32 v15, v15, 4, v13
    s_lshl_b32 s31, s{SROLE}, 8
    s_add_u32 s31, s31, s29
    s_add_u32 s31, s31, 8192
    v_add_u32 v15, s31, v15
    v_and_b32 v13, 15, v1
    s_lshl_b32 s28, s28, 4
    v_add_u32 v13, s28, v13
    v_lshlrev_b32 v12, 2, v12
    v_sub_u32 v13, v13, v12
    """)
    for i in range(8):
        A(f"v_cmp_gt_i32 s[{48+2*i}:{49+2*i}], {16*(i>>2) + (i&3)}, v13")
    A(f"""
    s_branch L_qk_c3
    L_qk_c2:
    s_mul_i32 s28, s75, 6
    v_and_b32 v14, 1, v1
    v_mul_u32_u24 v14, 5, v14
    v_add_u32 v14, s28, v14
    v_lshrrev_b32 v14, 3, v14
    v_bfe_u32 v12, v1, 1, 1
    v_mul_u32_u24 v12, 24, v12
    v_add_u32 v14, v14, v12
    v_lshlrev_b32 v14, 7, v14
    v_add_u32 v14, {WS_FLAG}, v14
    L_qk_c3:
    s_mov_b32 s80, {f2u(CEXP)}
    s_mov_b32 s81, 0xf149f2ca
    s_mov_b32 s82, 0x00ff00ff
    s_mov_b32 s83, 0x00ff00ff
    """)
    def prefetch(name):
        A(f"s_cmp_eq_u32 s{SW}, 3\ns_cbranch_scc0 {name}_skip\ns_cmp_ge_u32 s64, 65\ns_cbranch_scc1 {name}_skip")
        wait_progress(A, 78, 64, 14, 12, name + "_w")
        for m, (wsb, lb) in enumerate(((WS_KX, KX), (WS_QX, QX))):
            for i in range(12):
                if i % 4 == 0:
                    A(f"s_add_u32 m0, s66, {lb + i*1024}\ns_add_u32 s28, s79, {wsb + i*1024}")
                A(f"buffer_load_dwordx4 v2, s[4:7], s28 offen offset:{(i%4)*1024} sc1 lds")
        A(f"s_add_u32 s79, s79, 393216\n{name}_skip:")
    ACC = 56; STG = 80
    def stg(kc): return STG + 8 * kc if kc < 4 else STG + 8 * (kc & 1)
    def pre_main():
        for kc in range(4):
            A(f"ds_read_b128 v[{stg(kc)}:{stg(kc)+3}], v11 offset:{kc*2048}\nds_read_b128 v[{stg(kc)+4}:{stg(kc)+7}], v11 offset:{kc*2048+1024}")
    A("s_mov_b32 s64, 1\ns_mov_b32 s66, 0\ns_mov_b32 s65, 0")
    prefetch("L_qk_pf0")
    slot_advance(A, 77, 74, 76)
    A("s_mov_b32 s95, 0")
    A("L_qk_loop:")
    pre_main()
    A(f"s_add_u32 s28, s65, {KX}\nv_add_u32 v12, s28, v2\ns_xor_b32 s66, s65, 24576")
    A("s_waitcnt vmcnt(0) lgkmcnt(0)\ns_barrier")
    if opt.get("sq"): A(f"s_sleep {opt['sq']}")
    KXR = [16 + 4 * i for i in range(9)] + [96, 100, 104]
    cs = 2 if opt.get("cstamp") else 0
    kxs = {2: [0, 1], 3: [2, 3], 4: [4, 9], 5: [5, 10], 6: [6, 11], 7: [7], 8: [8], 9: []}
    lds = Track()
    def mm(kc, t):
        if t == 5:
            if kc >= 4: A(f"s_waitcnt lgkmcnt({0 if (cs and kc == 4) else lds.after(('w', kc))})")
            b = v(stg(kc), 8)
        else:
            b = r(W(t, kc), 8)
        A(f"v_smfmac_f32_16x16x64_bf16 {v(ACC+4*t,4)}, {v(16+4*kc,4)}, {b}, v10")
    def ag(kc):
        L = []
        if kc + 2 < 10:
            L += [(f"ds_read_b128 v[{stg(kc+2)+4*h}:{stg(kc+2)+4*h+3}], v11 offset:{(kc+2)*2048+h*1024}", ("w", kc + 2)) for h in range(2)]
        L += [(f"ds_read_b128 {v(KXR[i],4)}, v12 offset:{i*1024}", "kx") for i in kxs[kc]]
        return L
    def qk_tail(q, retry):
        val = ["v_max3_u32 v5, v48, v49, v50", "v_max3_u32 v5, v5, v51, v52", "v_max3_u32 v5, v5, v53, v54\nv_max_u32 v5, v5, v55", "v_cmp_eq_u32 vcc, -1, v5"]
        for t in range(6):
            mm(7, t)
            room = 1 if t in (0, 4, 5) else 2
            if t == 0: A("s_waitcnt vmcnt(0)")
            while q and room > 0:
                ins, tg = q.pop(0); A(ins); lds.add(tg); room -= 1
            if t < 4: A(val[t])
        q += ag(7)
        A("s_cbranch_vccnz L_qk_rt89\nL_qk_bk89:")
        order = [0, 1, 2, 5, 3, 4]
        def cv(t, h):
            a0 = ACC + 4 * t
            return f"v_cvt_pk_bf16_f32 v{a0+h}, v{a0+2*h}, v{a0+2*h+1}"
        def wr(t): return f"ds_write_b64 v8, v[{ACC+4*t}:{ACC+4*t+1}] offset:{(t//3)*6144 + (t%3)*512}"
        for i in range(12):
            t, kc = order[i // 2], 8 + (i & 1)
            b = v(stg(kc), 8) if t == 5 else r(W(t, kc), 8)
            A(f"v_smfmac_f32_16x16x64_bf16 {v(ACC+4*t,4)}, {v(16+4*kc,4)}, {b}, v10")
            sc = []
            if i >= 5 and i % 2 == 1: sc.append((wr(order[(i - 5) // 2]), "t"))
            while q and len(sc) < 2: sc.append(q.pop(0))
            for ins, tg in sc: A(ins); lds.add(tg)
            n = len(sc)
            if i in (4, 6): A(f"s_waitcnt lgkmcnt({lds.after(('w', 6 + i // 2))})"); n += 1
            if i >= 3:
                if n < 2: A(f"s_nop {1 - n}")
                A(cv(order[(i - 3) // 2], (i - 3) % 2))
            elif n < 3: A(f"s_nop {2 - n}")
        cstamp(A, opt, 3)
        assert not q
        A(cv(order[4], 1)); A(wr(order[4]))
        for ins, tg in ag(8): A(ins)
        A("s_nop 1")
        A(cv(order[5], 0)); A(cv(order[5], 1)); A(wr(order[5]))
    qk_retry = main_stream(A, opt, "L_qk", 76, 6, opt.get("qf", 1), mm, ag, 5, lds, [f"v_mov_b32 v{ACC+i}, 0" for i in range(24)], tail=qk_tail)
    A("s_waitcnt lgkmcnt(0)\ns_barrier")
    cstamp(A, opt, 1)
    if cs: A("s_waitcnt lgkmcnt(0)")
    A(f"s_cmp_eq_u32 s{SW}, 0\ns_cbranch_scc0 L_qk_x")
    QR = [56, 60, 64]; KMR = [68, 72, 76]; S0, S1, SM = 80, 84, 88
    def rd_q(f, xrow):
        if xrow: A(f"ds_read_b128 {v(QR[f%3],4)}, v13 offset:{f*1024}")
        else:
            A(f"ds_read_b64_tr_b16 {v(QR[f%3],2)}, v9 offset:{2*f*512}\nds_read_b64_tr_b16 {v(QR[f%3]+2,2)}, v9 offset:{(2*f+1)*512}")
    def rd_km(f):
        A(f"ds_read_b64_tr_b16 {v(KMR[f%3],2)}, v9 offset:{6144+2*f*512}\nds_read_b64_tr_b16 {v(KMR[f%3]+2,2)}, v9 offset:{6144+(2*f+1)*512}")
    def scores(xrow):
        n = 3 if xrow else 4
        for f in range(3): rd_q(f, xrow); rd_km(f)
        for f in range(6):
            A(f"s_waitcnt lgkmcnt({n*min(2, 5-f)})")
            c0, c1, cm = ("0", "0", "0") if f == 0 else (v(S0,4), v(S1,4), v(SM,4))
            A(f"v_mfma_f32_16x16x32_bf16 {v(SM,4)}, {v(KMR[f%3],4)}, {v(QR[f%3],4)}, {cm}")
            A(f"v_mfma_f32_16x16x32_bf16 {v(S0,4)}, {v(KXR[f],4)}, {v(QR[f%3],4)}, {c0}")
            A(f"v_mfma_f32_16x16x32_bf16 {v(S1,4)}, {v(KXR[6+f],4)}, {v(QR[f%3],4)}, {c1}")
            if f + 3 < 6: rd_q(f + 3, xrow); rd_km(f + 3)
        A("s_nop 5")
        A(f"v_permlane32_swap_b32 v{SM}, v{SM+1}\nv_permlane32_swap_b32 v{SM+2}, v{SM+3}")
        A(f"v_add_f32 v{SM}, v{SM}, v{SM+1}\nv_add_f32 v{SM+1}, v{SM+2}, v{SM+3}")
    def allred_g(x, t, op):
        A(f"v_mov_b32 v{t}, v{x}\ns_nop 1\nv_permlane16_swap_b32 v{x}, v{t}\n{op} v{x}, v{x}, v{t}")
        A(f"v_mov_b32 v{t}, v{x}\ns_nop 1\nv_permlane32_swap_b32 v{x}, v{t}\n{op} v{x}, v{x}, v{t}")
    scores(False)
    X = 92
    for j in range(4):
        A(f"v_add_f32_dpp v{X+j}, v{S0+j}, v{S0+j} row_ror:8 row_mask:0xf bank_mask:0x3")
    for j in range(4):
        A(f"v_add_f32_dpp v{X+j}, v{S1+j}, v{S1+j} row_ror:8 row_mask:0xf bank_mask:0xc")
    A(f"v_add_f32_dpp v96, v{SM}, v{SM} row_ror:8 row_mask:0xf bank_mask:0x3")
    A(f"v_add_f32_dpp v96, v{SM+1}, v{SM+1} row_ror:8 row_mask:0xf bank_mask:0xc")
    A(f"v_max3_f32 v97, v{X}, v{X+1}, v{X+2}\nv_max3_f32 v97, v97, v{X+3}, v96\ns_nop 1")
    A("v_max_f32_dpp v97, v97, v97 row_ror:8 row_mask:0xf bank_mask:0xf")
    allred_g(97, 98, "v_max_f32")
    A("v_mul_f32 v97, s80, v97")
    for j in range(5): A(f"v_fma_f32 v{X+j}, v{X+j}, s80, -v97")
    for j in range(5): A(f"v_exp_f32 v{X+j}, v{X+j}")
    A(f"v_add_f32 v97, v{X}, v{X+1}\nv_add_f32 v98, v{X+2}, v{X+3}\nv_add_f32 v97, v97, v96\nv_add_f32 v97, v97, v98\ns_nop 1")
    A("v_add_f32_dpp v97, v97, v97 row_ror:8 row_mask:0xf bank_mask:0xf")
    allred_g(97, 98, "v_add_f32")
    A("v_rcp_f32 v97, v97\ns_nop 0")
    A("v_mul_f32 v96, v96, v97")
    for j in range(4): A(f"v_mul_f32 v{X+j}, v{X+j}, v97")
    A("v_mov_b32_dpp v98, v96 row_ror:8 row_mask:0xf bank_mask:0xf")
    A(f"v_cvt_pk_bf16_f32 v100, v{X}, v{X+1}\nv_cvt_pk_bf16_f32 v101, v{X+2}, v{X+3}\nv_cvt_pk_bf16_f32 v102, v96, v98")
    A("v_min_u32 v100, -2, v100\nv_min_u32 v101, -2, v101\nv_min_u32 v102, -2, v102")
    A("buffer_store_dwordx2 v[100:101], v14, s[4:7], s76 offen")
    A("s_mov_b64 exec, s[82:83]\nbuffer_store_dword v102, v15, s[4:7], s76 offen\ns_mov_b64 exec, -1")
    cstamp(A, opt, 2)
    A("s_barrier")
    A("s_add_u32 s28, s77, 3\ns_and_b32 s28, s28, 3\ns_lshl_b32 s28, s28, 17\ns_add_u32 s28, s28, s74")
    A("v_mov_b32 v104, -1\nv_mov_b32 v105, -1")
    A("buffer_store_dwordx2 v[104:105], v14, s[4:7], s28 offen\nbuffer_store_dword v104, v15, s[4:7], s28 offen")
    A("s_branch L_qk_next")
    A("L_qk_x:")
    A(f"s_cmp_eq_u32 s{SW}, 3\ns_cbranch_scc1 L_qk_w3")
    if opt.get("xlate", 0): A("s_barrier")
    A(f"s_mul_i32 s28, s{SW}, 6144\ns_add_u32 s28, s28, {QX - 6144}\ns_add_u32 s28, s28, s65\nv_add_u32 v13, s28, v2")
    scores(True)
    A("v_mov_b32 v97, s81")
    vals = [S0 + j for j in range(4)] + [S1 + j for j in range(4)]
    for i, x in enumerate(vals): A(f"v_cndmask_b32 v{x}, v{x}, v97, s[{48+2*i}:{49+2*i}]")
    vals += [SM, SM + 1]
    A(f"v_max3_f32 v97, v{vals[0]}, v{vals[1]}, v{vals[2]}")
    for i in (3, 5, 7): A(f"v_max3_f32 v97, v97, v{vals[i]}, v{vals[i+1]}")
    A(f"v_max_f32 v97, v97, v{vals[9]}")
    allred_g(97, 98, "v_max_f32")
    A("v_mul_f32 v97, s80, v97")
    for x in vals: A(f"v_fma_f32 v{x}, v{x}, s80, -v97")
    for x in vals: A(f"v_exp_f32 v{x}, v{x}")
    A(f"s_nop 0\nv_add_f32 v97, v{vals[0]}, v{vals[1]}")
    for x in vals[2:]: A(f"v_add_f32 v97, v97, v{x}")
    allred_g(97, 98, "v_add_f32")
    A("v_rcp_f32 v97, v97\ns_nop 0")
    for x in vals: A(f"v_mul_f32 v{x}, v{x}, v97")
    for i in range(5): A(f"v_cvt_pk_bf16_f32 v{100+i}, v{vals[2*i]}, v{vals[2*i+1]}")
    if not opt.get("xlate", 0): A("s_barrier")
    A("buffer_store_dwordx4 v[100:103], v14, s[4:7], s76 offen\nbuffer_store_dword v104, v15, s[4:7], s76 offen")
    A("s_branch L_qk_next")
    A("L_qk_w3:")
    if not opt.get("kqearly", 0): A("s_barrier")
    A("s_add_u32 s64, s77, 2")
    prefetch("L_qk_pf")
    if opt.get("kqearly", 0): A("s_barrier")
    A("L_qk_next:\ns_mov_b32 s65, s66")
    csave(A, opt, 4, 5, 77)
    A("s_add_u32 s77, s77, 1")
    slot_advance(A, 77, 74, 76)
    A("s_cmp_lt_u32 s77, 64\ns_cbranch_scc1 L_qk_loop")
    A(f"""
    s_waitcnt vmcnt(0)
    s_barrier
    s_cmp_eq_u32 s{SW}, 0
    s_cbranch_scc0 L_qk_end
    v_mov_b32 v100, 0
    v_mov_b32 v101, 0
    buffer_store_dwordx2 v[100:101], v14, s[4:7], s76 offen
    buffer_store_dword v100, v15, s[4:7], s76 offen
    L_qk_end:
    """)
    cdump(A, opt, 4, 108)
    stamp(A, opt, 2)
    A("s_waitcnt vmcnt(0)\ns_endpgm")
    main_retries(A, "L_qk", 76, qk_retry, 5)
    A("L_qk_rt89:")
    tick(A)
    A(aload(8, 76) + "\n" + aload(9, 76) + "\ns_waitcnt vmcnt(0)")
    A("v_max3_u32 v5, v48, v49, v50\nv_max3_u32 v5, v5, v51, v52\nv_max3_u32 v5, v5, v53, v54\nv_max_u32 v5, v5, v55\nv_cmp_eq_u32 vcc, -1, v5")
    A("s_cbranch_vccnz L_qk_rt89\ns_branch L_qk_bk89")

def gen_vo(A, opt):
    A("L_vo:")
    WL, MEMB, TB = 0, 81920, 92160
    def R8(i): return 256 + 8 * i if i < 32 else 112 + 8 * (i - 32)
    def WV(t, kc): return R8(t * 10 + kc)
    def WO(j, f): return R8(30 + 4 * j + f)
    A(f"s_sub_u32 s{SROLE}, s{SROLE}, 8\ns_lshl_b32 s75, s{SGRP}, 3\ns_add_u32 s75, s75, s{SROLE}")
    srd(A, 12, A_WV, 640 * 12288)
    srd(A, 16, A_WO, 6144 * 1280)
    slab192_addr(A, 3, 75)
    main_tr_base(A, 6)
    A(f"s_lshl_b32 s28, s{SW}, 5\ns_add_u32 s29, s28, 256\nv_add_u32 v9, s29, v6\ns_lshl_b32 s28, s{SW}, 6\nv_add_u32 v6, s28, v6\ns_mul_i32 s30, s{SW}, 6144")
    A(f"""
    v_and_b32 v8, 16, v1
    v_lshrrev_b32 v12, 5, v1
    v_lshl_add_u32 v8, v12, 2, v8
    v_bfe_u32 v12, v1, 2, 1
    v_add_u32 v8, v8, v12
    v_mul_u32_u24 v8, 1280, v8
    v_bfe_u32 v12, v1, 3, 1
    v_lshl_add_u32 v8, v12, 5, v8
    v_and_b32 v12, 3, v1
    v_lshl_add_u32 v8, v12, 3, v8
    s_mul_i32 s28, s{SW}, 320
    v_add_u32 v8, s28, v8
    s_mul_i32 s32, s{SW}, 10240
    s_mul_i32 s33, s75, 245760
    s_add_u32 s33, s33, s32
    """)
    NB = 4
    chunks = [("v", kc, 0) for kc in range(10)] + [("o", f, 0) for f in range(6)]
    cnt = lambda c: 6 if c[0] == "v" else 10
    def issue(ci):
        kind, k, hb = chunks[ci]
        lb = (ci % NB) * 40960
        if kind == "v": slab192_issue(A, 3, 12, k, lb)
        else:
            for i in range(10):
                if i % 4 == 0:
                    A(f"s_add_u32 m0, s32, {lb + i*1024}\ns_add_u32 s31, s33, {k * 40960 + i*1024}")
                A(f"buffer_load_dwordx4 v2, s[16:19], s31 offen offset:{(i%4)*1024} lds")
    for ci in range(NB - 1): issue(ci)
    for ci, (kind, k, hb) in enumerate(chunks):
        last = min(len(chunks) - 1, ci + NB - 2)
        A(f"s_waitcnt vmcnt({sum(cnt(chunks[j]) for j in range(ci+1, last+1))})\ns_barrier")
        if ci + NB - 1 < len(chunks): issue(ci + NB - 1)
        lb = (ci % NB) * 40960
        if kind == "v":
            A(f"v_add_u32 v7, {lb}, v6\nv_add_u32 v10, {lb}, v9")
            for t in range(3):
                for u in range(4):
                    A(f"ds_read_b64_tr_b16 {r(WV(t,k) + 2*u, 2)}, v{7 if t < 2 else 10} offset:{UOFF[u]*384 + (t*32 if t < 2 else 0)}")
        else:
            A(f"v_add_u32 v7, {lb}, v8")
            for j in range(5):
                dst = WO(j, k) if k < 4 else 16 + 8 * (2 * j + k - 4)
                for u in range(4):
                    A(f"ds_read_b64_tr_b16 {r(dst + 2*u, 2)}, v7 offset:{(8*(u>>1) + 2*(u&1))*1280 + j*64}")
                if j == 2: A("s_waitcnt lgkmcnt(0)")
        A("s_waitcnt lgkmcnt(0)")
    A("s_barrier")
    A(f"s_mul_i32 s28, s{SW}, 20480\nv_add_u32 v11, s28, v2")
    for t in range(10):
        A(f"ds_write_b128 v11, v[{16+8*t}:{19+8*t}] offset:{t*2048}\nds_write_b128 v11, v[{20+8*t}:{23+8*t}] offset:{t*2048+1024}")
        if t % 4 == 3: A("s_waitcnt lgkmcnt(0)")
    A("s_waitcnt lgkmcnt(0)")
    stamp(A, opt, 1)
    producer_consts(A, MEMB, TB)
    A(f"""
    s_lshr_b32 s28, s{SW}, 1
    s_add_u32 s28, s28, 4
    s_lshl_b32 s28, s28, 9
    v_add_u32 v15, s28, v8
    s_lshl_b32 s28, s{SW}, 9
    v_add_u32 v8, s28, v8
    s_and_b32 s28, s{SW}, 1
    s_sub_u32 s82, s28, 1
    s_not_b32 s83, s82
    v_lshrrev_b32 v9, 2, v1
    v_lshlrev_b32 v9, 3, v9
    v_and_b32 v12, 1, v1
    v_lshl_add_u32 v9, v12, 7, v9
    v_xor_b32 v0, 64, v9
    v_add_u32 v9, {TB}, v9
    v_add_u32 v0, {TB + 256}, v0
    """)
    A(f"""
    v_lshrrev_b32 v14, 5, v1
    v_lshlrev_b32 v14, 11, v14
    v_and_b32 v12, 15, v1
    v_lshl_add_u32 v14, v12, 4, v14
    v_bfe_u32 v12, v1, 4, 1
    v_lshl_add_u32 v14, v12, 3, v14
    s_mul_i32 s28, s{SW}, 20480
    s_lshl_b32 s29, s{SROLE}, 8
    s_add_u32 s28, s28, s29
    s_add_u32 s28, s28, {R_UM}
    v_add_u32 v14, s28, v14
    """)
    wait_all_started(A, "L_vo_st", 12, 13)
    A(f"s_lshl_b32 s74, s{SGRP}, 19\ns_add_u32 s74, s74, {WS_RING}\ns_mov_b32 s77, 0")
    ACC = 56
    slot_advance(A, 77, 74, 76)
    A("s_mov_b32 s95, 0")
    A("L_vo_loop:")
    if opt.get("sv"): A(f"s_sleep {opt['sv']}")
    A1 = 100
    def wrd(t): A(f"ds_read_b128 v[{16+8*(t%4)}:{19+8*(t%4)}], v11 offset:{t*2048}\nds_read_b128 v[{20+8*(t%4)}:{23+8*(t%4)}], v11 offset:{t*2048+1024}")
    def mm(kc, t): A(f"v_smfmac_f32_16x16x64_bf16 {v(A1+4*t,4)}, {v(16+4*kc,4)}, {r(WV(t,kc),8)}, v10")
    def ag(kc):
        t = kc - 5
        if not 0 <= t < 4: return []
        return [(f"ds_read_b128 v[{16+8*t+4*h}:{19+8*t+4*h}], v11 offset:{t*2048+h*1024}", "w") for h in range(2)]
    vo_retry = main_stream(A, opt, "L_vo", 76, 3, opt.get("vf", 2), mm, ag, 5, Track(), [f"v_mov_b32 v{i}, 0" for i in list(range(56, 76)) + list(range(100, 112))])
    cstamp(A, opt, 2)
    A("s_nop 7")
    for j in range(4): A(f"v_mov_b32 v{84+j}, v{A1+8+j}")
    for j in range(4): A(f"v_permlane32_swap_b32 v{A1+j}, v{A1+4+j}")
    for j in range(4): A(f"v_permlane32_swap_b32 v{A1+8+j}, v{84+j}")
    for j in (0, 2): A(f"v_pk_add_f32 {v(A1+j,2)}, {v(A1+j,2)}, {v(A1+4+j,2)}")
    A(f"v_cvt_pk_bf16_f32 v88, v{A1}, v{A1+1}\nv_cvt_pk_bf16_f32 v89, v{A1+2}, v{A1+3}")
    A("ds_write_b64 v8, v[88:89]")
    for j in (0, 2): A(f"v_pk_add_f32 {v(A1+8+j,2)}, {v(A1+8+j,2)}, {v(84+j,2)}")
    A(f"v_cvt_pk_bf16_f32 v90, v{A1+8}, v{A1+9}\nv_cvt_pk_bf16_f32 v91, v{A1+10}, v{A1+11}")
    A("s_mov_b64 exec, s[82:83]\nds_write_b64 v15, v[90:91]\ns_mov_b64 exec, -1")
    A("s_waitcnt lgkmcnt(0)\ns_barrier")
    AF = 76
    lds = Track()
    for f in range(6):
        A(f"ds_read_b64_tr_b16 {v(AF+4*f,2)}, v9 offset:{f*512}\nds_read_b64_tr_b16 {v(AF+4*f+2,2)}, v0 offset:{f*512}")
        lds.add(("a", f)); lds.add(("a", f))
    def epi(j):
        a0 = ACC + 4 * j; p = 100 + 2 * j
        return [[f"v_cvt_pk_bf16_f32 v{p}, v{a0}, v{a0+2}"], [f"v_cvt_pk_bf16_f32 v{p+1}, v{a0+1}, v{a0+3}"],
                [f"v_min_u32 v{p}, -2, v{p}"], [f"s_add_u32 s28, s76, {j*4096}", f"v_min_u32 v{p+1}, -2, v{p+1}"],
                [f"buffer_store_dwordx2 v[{p}:{p+1}], v14, s[4:7], s28 offen"]]
    pend = []; nxt = []
    for j in range(5):
        for f in range(6):
            if j == 0: A(f"s_waitcnt lgkmcnt({lds.after(('a', f))})")
            if f == 4 and j >= 2: A(f"s_waitcnt lgkmcnt({lds.after(('w', 2*j+1))})")
            b = r(WO(j, f), 8) if f < 4 else v(16 + 8 * ((2*j + f - 4) % 4), 8)
            A(f"v_smfmac_f32_16x16x64_bf16 {v(ACC+4*j,4)}, {v(AF+4*f,4)}, {b}, v10")
            if j >= 1 and f < 2 and 2*j + 2 + f < 10:
                t = 2*j + 2 + f
                wrd(t); lds.add(("w", t)); lds.add(("w", t))
            if f == 4: pend += nxt; nxt = []
            if pend and f != 3:
                for x in pend.pop(0): A(x)
        nxt = epi(j)
    n = 0
    for g_ in pend:
        for x in g_: A(x); n += 1
    A(f"s_nop {max(0, 7 - n)}")
    for g_ in nxt:
        for x in g_: A(x)
    cstamp(A, opt, 1)
    A("s_barrier")
    csave(A, opt, 3, 5, 77)
    if opt.get("voarm", 1):
        A("s_add_u32 s28, s77, 3\ns_and_b32 s28, s28, 3\ns_lshl_b32 s28, s28, 17\ns_add_u32 s28, s28, s74\nv_mov_b32 v6, -1\nv_mov_b32 v7, -1")
        for j in range(5): A("buffer_store_dwordx2 v[6:7], v14, s[4:7], s28 offen\ns_add_u32 s28, s28, 4096")
    A("s_add_u32 s77, s77, 1")
    slot_advance(A, 77, 74, 76)
    A("s_cmp_lt_u32 s77, 64\ns_cbranch_scc1 L_vo_loop")
    cdump(A, opt, 3, 12)
    stamp(A, opt, 2)
    A("s_waitcnt vmcnt(0)\ns_endpgm")
    main_retries(A, "L_vo", 76, vo_retry, 5)

def gen_red(A, opt):
    A("L_red:")
    PB, PXB = 0, 8192
    A(f"s_sub_u32 s{SROLE}, s{SROLE}, 16\ns_lshl_b32 s75, s{SROLE}, 2\ns_add_u32 s75, s75, s{SW}")
    A(f"s_lshl_b32 s74, s{SGRP}, 19\ns_add_u32 s74, s74, {WS_RING}")
    A(f"""
    s_mul_i32 s28, s{SW}, 1280
    s_add_u32 s28, s28, {R_PM}
    v_add_u32 v3, s28, v2
    v_lshlrev_b32 v4, 2, v1
    s_add_u32 s28, s28, 1024
    v_add_u32 v4, s28, v4
    v_bfe_u32 v5, v1, 3, 2
    v_lshlrev_b32 v5, 4, v5
    v_lshrrev_b32 v12, 5, v1
    v_lshl_add_u32 v5, v12, 3, v5
    v_and_b32 v13, 7, v1
    v_add_u32 v5, v5, v13
    v_lshlrev_b32 v5, 4, v5
    s_lshl_b32 s28, s{SW}, 10
    v_add_u32 v5, s28, v5
    s_lshl_b32 s28, s{SW}, 1
    v_add_u32 v12, s28, v12
    v_and_b32 v6, 3, v12
    v_lshlrev_b32 v6, 4, v6
    v_lshrrev_b32 v12, 2, v12
    v_lshl_add_u32 v6, v12, 3, v6
    v_bfe_u32 v12, v1, 2, 3
    v_add_u32 v6, v6, v12
    v_lshlrev_b32 v6, 4, v6
    v_and_b32 v12, 3, v1
    v_lshl_add_u32 v6, v12, 2, v6
    v_add_u32 v6, 4096, v6
    s_lshl_b32 s28, s75, 11
    s_add_u32 s28, s28, {R_UM}
    v_add_u32 v7, s28, v2
    v_lshlrev_b32 v8, 4, v13
    v_lshrrev_b32 v12, 5, v1
    v_lshl_add_u32 v8, v12, 7, v8
    v_bfe_u32 v12, v1, 4, 1
    v_lshl_add_u32 v8, v12, 3, v8
    s_lshl_b32 s28, s75, 8
    v_add_u32 v8, s28, v8
    s_mov_b32 s82, 0x00ff00ff
    s_mov_b32 s83, 0x00ff00ff
    """)
    XW = 4
    A(f"""
    v_mul_u32_u24 v13, {XW}, v1
    s_lshr_b32 s28, s75, 2
    s_lshl_b32 s28, s28, 14
    s_and_b32 s29, s75, 3
    s_lshl_b32 s29, s29, 11
    s_add_u32 s28, s28, s29
    s_add_u32 s28, s28, {WS_XR}
    v_add_u32 v13, s28, v13
    v_bfe_u32 v12, v1, 3, 1
    v_lshl_add_u32 v8, v12, 2, v8
    """)
    for d, reg in enumerate((9, 10, 11, 16)):
        A(f"s_add_u32 s29, s{SGRP}, {d}\ns_and_b32 s29, s29, 3\ns_lshl_b32 s29, s29, 9\nv_add_u32 v{reg}, s29, v13")
    A(f"""
    s_lshl_b32 s28, s75, 15
    s_lshl_b32 s29, s{SGRP}, 13
    s_add_u32 s28, s28, s29
    s_add_u32 s28, s28, {WS_UX}
    v_add_u32 v18, s28, v2
    v_add_u32 v19, 4096, v18
    v_and_b32 v20, 7, v1
    s_lshl_b32 s28, s{SGRP}, 3
    v_add_u32 v20, s28, v20
    v_lshlrev_b32 v20, 7, v20
    v_add_u32 v20, {WS_FLAG + FL_PU*128}, v20
    s_mul_i32 s28, s{SGRP}, 10
    s_add_u32 s28, s28, s{SROLE}
    s_lshl_b32 s28, s28, 7
    s_add_u32 s28, s28, {WS_FLAG + FL_RED*128}
    v_mov_b32 v21, s28
    s_mul_i32 s28, s{SGRP}, {64*40960}
    s_lshl_b32 s29, s75, 10
    s_add_u32 s28, s28, s29
    s_add_u32 s28, s28, {WS_OP}
    v_add_u32 v22, s28, v2
    s_mul_i32 s30, s{SW}, 5120
    s_add_u32 s28, s30, {R_PX}
    v_add_u32 v23, s28, v2
    v_add_u32 v24, {PXB}, v2
    v_mov_b32 v28, -1
    v_mov_b32 v29, -1
    v_mov_b32 v30, -1
    v_mov_b32 v31, -1
    """)
    srd(A, 12, A_MEM0, 10240)
    A(f"""
    v_and_b32 v12, 7, v1
    v_mul_u32_u24 v12, 1280, v12
    v_lshrrev_b32 v13, 3, v1
    v_lshl_add_u32 v12, v13, 2, v12
    s_lshl_b32 s28, s75, 5
    buffer_load_dword v82, v12, s[12:15], s28 offen
    """)
    wait_all_started(A, "L_red_st", 12, 13)
    A("v_min_u32 v82, -2, v82\nbuffer_store_dword v82, v8, s[4:7], s74 offen")
    A(f"s_mov_b32 s77, 0\ns_mov_b32 s78, 0\ns_mov_b32 s79, 0\ns_mov_b32 s80, {opt.get('pol', 0) << 13}\ns_mov_b32 s81, 0")
    UX = lambda par, h: 128 + 40 * par + 4 * h
    UM = lambda par, j: 128 + 40 * par + 32 + 4 * j
    if "pol" not in opt:
        A(f"""
        s_or_b32 s28, s75, s{SGRP}
        s_cmp_eq_u32 s28, 0
        s_cbranch_scc0 L_red_polw
        s_mov_b32 s66, -1
        s_mov_b32 s67, -1
        s_mov_b32 s31, 8
        L_red_pm:
        """)
        for p in range(2):
            A(f"""
            v_mov_b32 v84, -1
            v_mov_b32 v85, -1
            s_mov_b32 s29, {196608 + (p << 13)}
            s_memtime s[92:93]
            s_waitcnt lgkmcnt(0)
            buffer_atomic_swap v84, v9, s[4:7], s29 offen sc0 sc1
            s_waitcnt vmcnt(0)
            s_memtime s[94:95]
            s_waitcnt lgkmcnt(0)
            s_sub_u32 s28, s94, s92
            s_min_u32 s{66+p}, s{66+p}, s28
            """)
        A(f"""
        s_sub_u32 s31, s31, 1
        s_cmp_gt_u32 s31, 0
        s_cbranch_scc1 L_red_pm
        s_cmp_lt_u32 s67, s66
        s_cselect_b32 s28, 2, 1
        v_mov_b32 v12, s28
        v_mov_b32 v13, {DB_POL}
        buffer_store_dword v12, v13, s[8:11], 0 offen sc1
        L_red_polw:
        v_mov_b32 v13, {DB_POL}
        L_red_polp:
        buffer_load_dword v12, v13, s[8:11], 0 offen sc1
        s_waitcnt vmcnt(0)
        v_readfirstlane_b32 s28, v12
        s_nop 3
        s_cmp_lg_u32 s28, 0
        s_cbranch_scc1 L_red_polok
        s_sleep 4
        """)
        tick(A)
        A("""
        s_branch L_red_polp
        L_red_polok:
        s_and_b32 s28, s28, 2
        s_lshl_b32 s80, s28, 12
        """)
    PF = 32
    AC = 52
    def uxload(par, name):
        wait_progress(A, 78, 64, 20, 12, name)
        for h in range(8):
            A(f"buffer_load_dwordx4 {v(UX(par,h),4)}, v{18 + h//4}, s[4:7], s79 offen offset:{(h%4)*1024} sc1")
        A("s_add_u32 s79, s79, 1310720")
    A("s_mov_b32 s64, 1")
    uxload(0, "L_red_u0")
    stamp(A, opt, 1)
    K = opt.get("xk", 1)
    T, XR, O = 80, 84, 96
    def pl(b): return [f"buffer_load_dwordx4 v[{b}:{b+3}], v3, s[4:7], s76 offen sc1", f"buffer_load_dword v{b+4}, v4, s[4:7], s76 offen sc1"]
    def pw(b): A(f"ds_write_b128 v5, v[{b}:{b+3}]\nds_write_b32 v6, v{b+4}")
    def uml(par):
        um = UM(par, 0)
        return [f"buffer_load_dwordx4 {v(um,4)}, v7, s[4:7], s76 offen sc1", f"buffer_load_dwordx4 {v(um+4,4)}, v7, s[4:7], s76 offen offset:1024 sc1"]
    fixups = []
    def gather(L, par, with_um):
        if with_um:
            um = UM(par, 0)
            A(f"s_branch {L}_um\n{L}_um_r:")
            tick(A)
            A(f"{L}_um:")
            for i in pl(64) + uml(par): A(i)
            A("s_waitcnt vmcnt(2)")
            chk(A, range(64, 69), 60)
            A(f"s_cbranch_vccz {L}_pU\ns_waitcnt vmcnt(0)")
            fixups.append((L, par))
            chk(A, range(um, um + 8), 60)
            A(f"s_cbranch_vccnz {L}_um_r")
            cstamp(A, opt, 4)
        poll2(A, f"{L}_pp", pl(64), range(64, 69), pl(72), range(72, 77), f"{L}_pA", f"{L}_pB", 60)
        A(f"{L}_pB:"); pw(72); A(f"s_branch {L}_pw")
        A(f"{L}_pA:"); pw(64)
        A(f"{L}_pw:\ns_waitcnt lgkmcnt(0)\ns_barrier")
    seq = [(qt, k) for k in range(10) for qt in range(2)]
    def xr(i): qt, k = seq[i]; A(f"ds_read_b128 {a(4*(i%8),4)}, v24 offset:{qt*10240 + k*1024}")
    def xout(uset, lo, hi):
        if lo == 0:
            for i in range(6): xr(i)
        for i in range(lo, hi):
            qt, k = seq[i]
            if i + 6 < 20: xr(i + 6)
            A(f"s_waitcnt lgkmcnt({min(6, 19-i)})")
            u = UX(uset, k) if k < 8 else UM(uset, k - 8)
            c = "0" if k == 0 else v(O + 4*qt, 4)
            A(f"v_mfma_f32_16x16x32_bf16 {v(O+4*qt,4)}, {v(u,4)}, {a(4*(i%8),4)}, {c}")
    def xstore():
        for i in range(4): A(f"v_cvt_pk_bf16_f32 v{112+i}, v{O+2*i}, v{O+2*i+1}")
        A("buffer_store_dwordx4 v[112:115], v22, s[4:7], s81 offen sc1")
        A("s_add_u32 s81, s81, 40960")
    def pxdma():
        A("s_add_u32 s28, s77, 3\ns_and_b32 s28, s28, 3\ns_lshl_b32 s28, s28, 17\ns_add_u32 s28, s28, s74")
        A(f"s_add_u32 m0, s30, {PXB}\ns_nop 0")
        for i in range(4): A(f"buffer_load_dwordx4 v23, s[4:7], s28 offen offset:{i*1024} sc1 lds")
        A(f"s_add_u32 m0, s30, {PXB + 4096}\ns_add_u32 s28, s28, 4096")
        A("buffer_load_dwordx4 v23, s[4:7], s28 offen sc1 lds")
    def xa(k): return f"s{65 + (k >> 1)} offen offset:{(k & 1) * 256} sc1"
    def xl(k, b): return [f"buffer_load_dword v{b+d}, v{reg}, s[4:7], {xa(k)}" for d, reg in enumerate((10, 11, 16))]
    A("L_red_loop:")
    for par in range(3):
        L = f"L_red{par}"
        nxt = (par + 1) % 3
        slot_advance(A, 77, 74, 76)
        A(f"s_lshl_b32 s65, s28, 1\ns_add_u32 s65, s65, s80\ns_add_u32 s66, s65, {1 << 20}")
        A("s_add_u32 s69, s77, 1\ns_and_b32 s69, s69, 3\ns_lshl_b32 s69, s69, 17\ns_add_u32 s69, s69, s74")
        if opt.get("sr"): A(f"s_sleep {opt['sr']}")
        gather(L, par, True)
        for k in range(5): A(f"ds_read_b128 {v(PF+4*k,4)}, v2 offset:{k*1024}")
        cstamp(A, opt, 0)
        for k in range(5):
            A(f"s_waitcnt lgkmcnt({0 if opt.get('cstamp') else 4-k})")
            ua, ub = (UX(par, 2*k), UX(par, 2*k+1)) if k < 4 else (UM(par, 0), UM(par, 1))
            ca, cb = ("0", "0") if k == 0 else (v(AC,4), v(AC+4,4))
            A(f"v_mfma_f32_16x16x32_bf16 {v(AC,4)}, {v(ua,4)}, {v(PF+4*k,4)}, {ca}")
            A(f"v_mfma_f32_16x16x32_bf16 {v(AC+4,4)}, {v(ub,4)}, {v(PF+4*k,4)}, {cb}")
        A("s_nop 7")
        for j in range(2): A(f"v_add_f32_dpp v{T+j}, v{AC+4+j}, v{AC+j} row_ror:8 row_mask:0xf bank_mask:0x3")
        for j in range(2): A(f"v_add_f32_dpp v{T+j}, v{AC+2+j}, v{AC+6+j} row_ror:8 row_mask:0xf bank_mask:0xc")
        A(f"v_cvt_pk_bf16_f32 v83, v{T}, v{T+1}\nv_min_u32 v83, -2, v83")
        cstamp(A, opt, 1)
        for k in range(K): A(f"buffer_store_dword v83, v9, s[4:7], {xa(k)}")
        if opt.get("cstamp"): A("s_waitcnt lgkmcnt(0)")
        for i in range(6): xr(i)
        cuts = [opt.get("xg", 14)] + ([opt.get("xg2", 20)] if K > 1 else [])
        def xo(lo, hi):
            for i in range(lo, hi):
                qt, k = seq[i]
                if i + 6 < 20: xr(i + 6)
                A(f"s_waitcnt lgkmcnt({min(6, 19-i)})")
                u = UX(nxt, k) if k < 8 else UM(nxt, k - 8)
                c = "0" if k == 0 else v(O + 4*qt, 4)
                A(f"v_mfma_f32_16x16x32_bf16 {v(O+4*qt,4)}, {v(u,4)}, {a(4*(i%8),4)}, {c}")
        done = 0
        for k, cut in enumerate(cuts):
            xo(done, cut); done = cut
            for i in xl(k, XR if k == 0 else 104): A(i)
        xo(done, 20)
        A(f"s_waitcnt vmcnt({3 * (K - 1)})")
        chk(A, range(XR, XR + 3), 60)
        A(f"s_cbranch_vccz {L}_xok")
        if K > 1:
            A(f"s_waitcnt vmcnt(0)\nv_min_u32 v{XR}, v{XR}, v104\nv_min_u32 v{XR+1}, v{XR+1}, v105\nv_min_u32 v{XR+2}, v{XR+2}, v106")
            chk(A, range(XR, XR + 3), 60)
            A(f"s_cbranch_vccz {L}_xok")
        poll1(A, f"{L}_x", xl(0, XR), range(XR, XR + 3), 60)
        A(f"{L}_xok:")
        for d in range(3): A(f"v_lshlrev_b32 v{90+2*d}, 16, v{XR+d}\nv_and_b32 v{91+2*d}, 0xffff0000, v{XR+d}")
        A(f"v_pk_add_f32 {v(T,2)}, {v(T,2)}, v[90:91]\nv_pk_add_f32 v[92:93], v[92:93], v[94:95]\nv_pk_add_f32 {v(T,2)}, {v(T,2)}, v[92:93]")
        A(f"v_cvt_pk_bf16_f32 v82, v{T}, v{T+1}\nv_min_u32 v82, -2, v82")
        cstamp(A, opt, 2)
        A("buffer_store_dword v82, v8, s[4:7], s69 offen")
        A("s_barrier")
        def t_ux():
            A("s_add_u32 s64, s77, 2")
            uxload(nxt, f"{L}_u")
        def t_out():
            if par < 2: A(f"s_cmp_lt_u32 s77, 2\ns_cbranch_scc1 {L}_noxo")
            xstore()
            A("s_sub_u32 s28, s77, 2")
            publish(A, 21, "s28", 12, f"{L}_pub")
            if par < 2: A(f"{L}_noxo:")
        def t_xarm():
            A("s_add_u32 s67, s77, 3\ns_and_b32 s67, s67, 3\ns_lshl_b32 s67, s67, 18\ns_add_u32 s67, s67, s80")
            for k in range(K): A(f"buffer_store_dword v28, v9, s[4:7], s67 offen offset:{(k & 1) * 256} sc1")
        def t_arm():
            if not opt.get("voarm", 1): A("buffer_store_dwordx4 v[28:31], v7, s[4:7], s76 offen\nbuffer_store_dwordx4 v[28:31], v7, s[4:7], s76 offen offset:1024")
            A("buffer_store_dword v28, v8, s[4:7], s76 offen")
        for ch in str(opt.get("tord", 51423)):
            {"1": t_ux, "2": t_out, "3": t_xarm, "4": t_arm, "5": pxdma}[ch]()
        cstamp(A, opt, 3)
        csave(A, opt, 5, 12, 77)
        A("s_add_u32 s77, s77, 1")
    A("s_cmp_lt_u32 s77, 63\ns_cbranch_scc1 L_red_loop")
    A("s_waitcnt vmcnt(0)\ns_barrier")
    publish(A, 21, "61", 12, "L_red_pe0")
    xout(1, 0, 20); A("s_nop 7"); xstore()
    slot_advance(A, 77, 74, 76)
    gather("L_rede0", 0, True)
    pxdma()
    A("s_waitcnt vmcnt(0)\ns_barrier")
    publish(A, 21, "62", 12, "L_red_pe1")
    xout(2, 0, 20); A("s_nop 7"); xstore()
    A("s_mov_b32 s77, 64")
    slot_advance(A, 77, 74, 76)
    gather("L_rede1", 0, False)
    pxdma()
    A("s_waitcnt vmcnt(0)\ns_barrier")
    publish(A, 21, "63", 12, "L_red_pe2")
    xout(0, 0, 20); A("s_nop 7"); xstore()
    A("s_waitcnt vmcnt(0)\ns_barrier")
    publish(A, 21, "64", 12, "L_red_pubend")
    stamp(A, opt, 2)
    A("s_waitcnt vmcnt(0)\ns_endpgm")
    for L, par in fixups:
        A(f"{L}_pU:")
        pw(64)
        A("s_waitcnt vmcnt(0)")
        chk(A, range(UM(par, 0), UM(par, 0) + 8), 60)
        A(f"s_cbranch_vccz {L}_pw")
        poll1(A, f"{L}_umf", uml(par), range(UM(par, 0), UM(par, 0) + 8), 60)
        A(f"s_branch {L}_pw")

def gen_sum(A, opt):
    A("L_sum:")
    srd(A, 12, OUT, 2048 * 5120)
    A(f"""
    v_and_b32 v3, 3, v1
    v_mul_u32_u24 v3, 10, v3
    v_add_u32 v3, s75, v3
    v_lshlrev_b32 v3, 7, v3
    v_add_u32 v3, {WS_FLAG + FL_RED*128}, v3
    s_lshl_b32 s28, s75, 2
    s_add_u32 s28, s28, s{SW}
    s_lshl_b32 s29, s28, 10
    s_add_u32 s29, s29, {WS_OP}
    v_add_u32 v4, s29, v2
    v_add_u32 v5, {64*40960}, v4
    v_add_u32 v6, {64*40960}, v5
    v_add_u32 v7, {64*40960}, v6
    v_and_b32 v8, 15, v1
    v_mul_u32_u24 v8, 5120, v8
    v_lshrrev_b32 v9, 4, v1
    v_lshl_add_u32 v8, v9, 4, v8
    s_lshl_b32 s28, s28, 6
    v_add_u32 v8, s28, v8
    v_add_u32 v9, {16*5120}, v8
    s_mov_b32 s77, 0
    s_mov_b32 s78, 0
    s_mov_b32 s79, 0
    s_mov_b32 s80, 0
    """)
    wait_all_started(A, "L_sum_st", 12, 13)
    A("L_sum_loop:\ns_add_u32 s64, s77, 1")
    wait_progress(A, 78, 64, 3, 12, "L_sum_w", sleep=1)
    for g in range(4):
        A(f"buffer_load_dwordx4 {v(48+4*g,4)}, v{4+g}, s[4:7], s79 offen sc1")
    A("s_waitcnt vmcnt(0)")
    for i in range(16):
        A(f"v_lshlrev_b32 v{16+2*i}, 16, v{48+i}\nv_and_b32 v{17+2*i}, 0xffff0000, v{48+i}")
    for i in range(8):
        A(f"v_add_f32 v{16+i}, v{16+i}, v{24+i}\nv_add_f32 v{32+i}, v{32+i}, v{40+i}\nv_add_f32 v{16+i}, v{16+i}, v{32+i}")
    for i in range(4):
        A(f"v_cvt_pk_bf16_f32 v{24+i}, v{16+2*i}, v{17+2*i}")
    for i in range(4):
        A(f"v_lshlrev_b32 v{16+2*i}, 16, v{24+i}\nv_and_b32 v{17+2*i}, 0xffff0000, v{24+i}")
    A("buffer_store_dwordx4 v[16:19], v8, s[12:15], s80 offen\nbuffer_store_dwordx4 v[20:23], v9, s[12:15], s80 offen")
    A(f"s_add_u32 s79, s79, 40960\ns_add_u32 s80, s80, {32*5120}\ns_add_u32 s77, s77, 1\ns_cmp_lt_u32 s77, 64\ns_cbranch_scc1 L_sum_loop")
    stamp(A, opt, 2)
    A("s_waitcnt vmcnt(0)\ns_endpgm")

def gen_all(A, opt):
    A("L_xo:\ns_endpgm")
    gen_qk(A, opt); gen_vo(A, opt); gen_red(A, opt); gen_sum(A, opt)
```

```python
from asmlib import *
from kgen import *
import struct
def f2u(x): return struct.unpack("<I", struct.pack("<f", x))[0]
DPP = "row_mask:0xf bank_mask:0xf"

def cmul(A, dr, di, ar, ai, br, bi):
    A(f"v_mul_f32 v{dr}, v{ar}, v{br}\nv_mul_f32 v{di}, v{ar}, v{bi}\nv_fma_f32 v{dr}, -v{ai}, v{bi}, v{dr}\nv_fma_f32 v{di}, v{ai}, v{br}, v{di}")

def gen_b1(A, opt):
    A("L_b1:")
    srd(A, 12, B_BRE, 640 * 1280)
    srd(A, 20, B_BIM, 640 * 1280)
    srd(A, 16, B_X, 2048 * 1280)
    A(f"""
    s_lshl_b32 s74, s75, 6
    s_lshr_b32 s28, s{SW}, 1
    s_lshl_b32 s28, s28, 5
    s_add_u32 s74, s74, s28
    s_and_b32 s28, s{SW}, 1
    s_lshl_b32 s28, s28, 2
    s_add_u32 s74, s74, s28
    v_bfe_u32 v3, v1, 2, 2
    v_lshlrev_b32 v3, 3, v3
    v_and_b32 v4, 3, v1
    v_add_u32 v3, v3, v4
    v_add_u32 v3, s74, v3
    v_mul_u32_u24 v3, 1280, v3
    v_lshrrev_b32 v4, 4, v1
    v_lshl_add_u32 v3, v4, 4, v3
    """)
    for ks in range(20):
        A(f"buffer_load_dwordx4 {a(4*ks,4)}, v3, s[12:15], 0 offen offset:{ks*64}")
        A(f"buffer_load_dwordx4 {a(80+4*ks,4)}, v3, s[20:23], 0 offen offset:{ks*64}")
    A(f"""
    v_lshrrev_b32 v5, 3, v1
    v_and_b32 v3, 7, v1
    v_xor_b32 v3, v3, v5
    v_lshlrev_b32 v3, 4, v3
    v_mul_u32_u24 v5, 1280, v5
    v_add_u32 v3, v3, v5
    s_mul_i32 s30, s{SW}, 10240
    v_add_u32 v3, s30, v3
    v_and_b32 v6, 7, v1
    v_xor_b32 v5, v4, v6
    v_lshlrev_b32 v5, 4, v5
    v_lshl_add_u32 v5, v6, 7, v5
    v_bfe_u32 v6, v1, 3, 1
    v_mul_u32_u24 v6, 10240, v6
    v_add_u32 v8, v5, v6
    v_xor_b32 v9, 64, v8
    """)
    def x_issue():
        for i in range(10):
            A(f"s_add_u32 m0, s80, {i * 1024 - i * 128}\ns_nop 0\nbuffer_load_dwordx4 v3, s[16:19], s78 offen offset:{i*128} lds")
    A("s_mov_b32 s78, 0\ns_mov_b32 s80, s30"); x_issue()
    A("s_mov_b32 s78, 40960\ns_add_u32 s80, s30, 40960"); x_issue()
    srd(A, 12, B_LRE, 1280); srd(A, 20, B_LIM, 1280); srd(A, 32, B_LDT, 1280)
    A(f"""
    v_lshlrev_b32 v5, 4, v4
    s_lshl_b32 s28, s74, 1
    v_add_u32 v5, s28, v5
    buffer_load_dwordx2 v[16:17], v5, s[12:15], 0 offen
    buffer_load_dwordx2 v[18:19], v5, s[20:23], 0 offen
    buffer_load_dwordx2 v[20:21], v5, s[32:35], 0 offen
    s_mov_b32 s81, {f2u(1.4426950408889634)}
    s_mov_b32 s82, {f2u(0.15915494309189535)}
    s_waitcnt vmcnt(0)
    """)
    LR, LI, DT = 24, 28, 32
    for base, src in ((LR, 16), (LI, 18), (DT, 20)):
        for j in range(4):
            if j % 2 == 0: A(f"v_lshlrev_b32 v{base+j}, 16, v{src + j//2}")
            else: A(f"v_and_b32 v{base+j}, 0xffff0000, v{src + j//2}")
    CR, CI = 128, 132
    PW = 136
    IJ = 184
    def pw(l, j): return PW + (l * 4 + j) * 3
    A("v_and_b32 v40, 15, v1\nv_cmp_eq_u32 vcc, 0, v40\nv_mov_b32 v41, 0")
    for j in range(4):
        a_, b_ = pw(0, j), pw(0, j) + 1
        A(f"""
        v_mul_f32 v36, s81, v{DT+j}
        v_exp_f32 v36, v36
        s_nop 0
        v_cvt_pk_bf16_f32 v36, v36, v36
        v_lshlrev_b32 v36, 16, v36
        v_mul_f32 v37, v36, v{LR+j}
        v_mul_f32 v38, v36, v{LI+j}
        v_mul_f32 v37, s81, v37
        v_exp_f32 v37, v37
        v_mul_f32 v38, s82, v38
        v_fract_f32 v38, v38
        v_cos_f32 v39, v38
        v_sin_f32 v38, v38
        s_nop 0
        v_mul_f32 v{a_}, v37, v39
        v_mul_f32 v{b_}, v37, v38
        v_add_f32 v36, -1.0, v{a_}
        v_mul_f32 v37, v{LR+j}, v{LR+j}
        v_fma_f32 v37, v{LI+j}, v{LI+j}, v37
        v_rcp_f32 v37, v37
        v_mul_f32 v38, v36, v{LR+j}
        v_fma_f32 v38, v{b_}, v{LI+j}, v38
        v_mul_f32 v39, v{b_}, v{LR+j}
        v_fma_f32 v39, -v36, v{LI+j}, v39
        v_add_f32 v37, v37, v37
        v_mul_f32 v{CR+j}, v38, v37
        v_mul_f32 v{CI+j}, v39, v37
        """)
        for l in range(1, 4):
            cmul(A, pw(l, j), pw(l, j) + 1, pw(l-1, j), pw(l-1, j) + 1, pw(l-1, j), pw(l-1, j) + 1)
        for l in range(4): A(f"v_sub_f32 v{pw(l,j)+2}, 0, v{pw(l,j)+1}")
        for i in range(3): A(f"v_cndmask_b32 v{IJ+3*j+i}, v41, v{pw(0,j)+i}, vcc")
    A(f"""
    s_lshl_b32 s28, s75, 12
    s_lshl_b32 s29, s{SW}, 10
    s_add_u32 s28, s28, s29
    s_add_u32 s28, s28, {WS_HS}
    v_add_u32 v6, s28, v2
    s_lshl_b32 s28, s75, 7
    s_add_u32 s28, s28, {WS_FLAG + FL_B1*128}
    v_mov_b32 v10, s28
    """)
    wait_all_started(A, "L_b1_st", 12, 13)
    stamp(A, opt, 1)
    H = lambda tt: 96 + 8 * tt
    AC = lambda tt: 16 + 8 * tt
    FR = 48; PK = 80
    for i in range(16): A(f"v_mov_b32 v{96+i}, 0\nv_mov_b32 v{16+i}, 0")
    A(f"s_mov_b32 s77, 0\ns_mov_b32 s76, {128*40960}\ns_mov_b32 s65, 0\ns_mov_b32 s78, 81920\ns_mov_b32 s79, 81920\ns_mov_b32 s83, 0")
    def scan(tt):
        T = Asm()
        h, hp, ac = H(tt), H(1 - tt), AC(tt)
        for j in range(4): cmul(T, h + j, h + 4 + j, ac + j, ac + 4 + j, CR + j, CI + j)
        for j in range(4):
            T(f"v_fmac_f32_dpp v{h+j}, v{hp+j}, v{IJ+3*j} row_ror:1 {DPP}")
            T(f"v_fmac_f32_dpp v{h+4+j}, v{hp+4+j}, v{IJ+3*j} row_ror:1 {DPP}")
            T(f"v_fmac_f32_dpp v{h+j}, v{hp+4+j}, v{IJ+3*j+2} row_ror:1 {DPP}")
            T(f"v_fmac_f32_dpp v{h+4+j}, v{hp+j}, v{IJ+3*j+1} row_ror:1 {DPP}")
        for l in range(4):
            sh = f"row_shr:{1 << l} {DPP} bound_ctrl:0"
            for j in range(4): T(f"v_mov_b32_dpp v{88+j}, v{h+j} {sh}")
            for j in range(4): T(f"v_fmac_f32_dpp v{h+j}, v{h+4+j}, v{pw(l,j)+2} {sh}")
            for j in range(4): T(f"v_fmac_f32_dpp v{h+4+j}, v{h+4+j}, v{pw(l,j)} {sh}")
            for j in range(4): T(f"v_fmac_f32 v{h+j}, v{88+j}, v{pw(l,j)}")
            for j in range(4): T(f"v_fmac_f32 v{h+4+j}, v{88+j}, v{pw(l,j)+1}")
        pk = PK + 4 * tt
        T(f"v_cvt_pk_bf16_f32 v{pk}, v{h}, v{h+1}\nv_cvt_pk_bf16_f32 v{pk+1}, v{h+2}, v{h+3}")
        T(f"v_cvt_pk_bf16_f32 v{pk+2}, -v{h+4}, -v{h+5}\nv_cvt_pk_bf16_f32 v{pk+3}, -v{h+6}, -v{h+7}")
        T(f"buffer_store_dwordx4 {v(pk,4)}, v6, s[4:7], s76 offen sc1")
        T("s_mov_b32 s76, s65\ns_add_u32 s65, s65, 40960")
        return [x.strip() for x in T.lines]
    A("L_b1_loop:")
    A("s_waitcnt vmcnt(12)\ns_barrier")
    A("s_sub_u32 s28, s77, 2\ns_max_i32 s28, s28, 0")
    publish(A, 10, "s28", 13, "L_b1_pub")
    A("s_add_u32 s80, s30, s79\nv_add_u32 v11, s83, v8\nv_add_u32 v12, s83, v9")
    def rd(q):
        tt, ks = divmod(q, 20)
        A(f"ds_read_b128 {v(FR + 4*(q%8), 4)}, v{11 + (ks & 1)} offset:{tt*20480 + (ks>>1)*1024}")
    for q in range(6): rd(q)
    for tt in range(2):
        pend = scan(1 - tt)
        n = 0
        for ks in range(20):
            q = tt * 20 + ks
            if q + 6 < 40: rd(q + 6)
            if q % 4 == 1:
                i = q // 4
                A(f"s_add_u32 m0, s80, {i * 1024 - i * 128}\ns_nop 0\nbuffer_load_dwordx4 v3, s[16:19], s78 offen offset:{i*128} lds")
            A(f"s_waitcnt lgkmcnt({min(6, 39-q)})")
            for z in range(2):
                c = "0" if ks == 0 else v(AC(tt) + 4*z, 4)
                A(f"v_mfma_f32_16x16x32_bf16 {v(AC(tt)+4*z,4)}, {a(80*z+4*ks,4)}, {v(FR+4*(q%8),4)}, {c}")
                n += 1
                if n >= 4:
                    for _ in range(4 if n < 24 else 3):
                        if pend: A(pend.pop(0))
        while pend: A(pend.pop(0))
    A(f"s_add_u32 s78, s78, 40960\ns_add_u32 s79, s79, 40960\ns_cmp_eq_u32 s79, {4*40960}\ns_cselect_b32 s79, 0, s79")
    A(f"s_add_u32 s83, s83, 40960\ns_cmp_eq_u32 s83, {4*40960}\ns_cselect_b32 s83, 0, s83")
    A("s_add_u32 s77, s77, 1\ns_cmp_lt_u32 s77, 64\ns_cbranch_scc1 L_b1_loop")
    A("s_nop 7")
    for ins in scan(1): A(ins)
    A("s_waitcnt vmcnt(0)\ns_barrier")
    publish(A, 10, "64", 13, "L_b1_pube")
    stamp(A, opt, 2)
    A("s_waitcnt vmcnt(0)\ns_endpgm")

def gen_b2(A, opt):
    A("L_b2:")
    A("s_cmp_ge_u32 s75, 5\ns_cselect_b32 s79, 1, 0\ns_mul_i32 s28, s79, 5\ns_sub_u32 s74, s75, s28")
    srd(A, 12, B_CRE, 640 * 1280)
    srd(A, 20, B_CIM, 640 * 1280)
    srd(A, 16, B_X, 2048 * 1280)
    srd(A, 32, OUT, 2048 * 5120)
    def W(t, k):
        i = (t * 10 + k) * 4
        return 256 + i if i < 256 else 192 + (i - 256)
    A(f"""
    v_and_b32 v3, 15, v1
    v_mul_u32_u24 v3, 1280, v3
    v_lshrrev_b32 v4, 4, v1
    v_lshl_add_u32 v3, v4, 4, v3
    s_mul_i32 s28, s74, {128*1280}
    s_mul_i32 s29, s{SW}, 320
    s_add_u32 s28, s28, s29
    v_add_u32 v3, s28, v3
    """)
    def ld(t):
        A(f"s_mov_b32 s31, {16*t*1280}")
        for i in range(5):
            for z in range(2):
                A(f"buffer_load_dwordx4 {v(16 + 40*(t%4) + 8*i + 4*z, 4)}, v3, s[{12 + 8*z}:{15 + 8*z}], s31 offen offset:{i*64}")
    def mv(dst, src): A(f"v_accvgpr_write_b32 a{dst-256}, v{src}" if dst >= 256 else f"v_mov_b32 v{dst}, v{src}")
    for t in range(4): ld(t)
    for t in range(8):
        A(f"s_waitcnt vmcnt({10 * (min(7, t + 3) - t)})")
        for i in range(5):
            sb = 16 + 40*(t%4) + 8*i
            for h2 in range(2):
                d = W(t, 2*i + h2)
                mv(d, sb + 2*h2); mv(d + 1, sb + 2*h2 + 1); mv(d + 2, sb + 4 + 2*h2); mv(d + 3, sb + 4 + 2*h2 + 1)
        if t + 4 < 8: ld(t + 4)
    srd(A, 12, B_DSK, 1280)
    A(f"""
    s_lshl_b32 s28, s74, 7
    s_lshl_b32 s29, s{SW}, 5
    s_add_u32 s28, s28, s29
    v_lshlrev_b32 v5, 2, v4
    v_add_u32 v5, s28, v5
    v_lshlrev_b32 v6, 1, v5
    buffer_load_dwordx2 v[16:17], v6, s[12:15], 0 offen
    buffer_load_dwordx2 v[18:19], v6, s[12:15], 0 offen offset:32
    v_and_b32 v7, 15, v1
    v_mul_u32_u24 v8, 1280, v7
    v_add_u32 v8, v8, v6
    v_mul_u32_u24 v9, 5120, v7
    v_lshl_add_u32 v9, v5, 2, v9
    v_add_u32 v9, 2560, v9
    s_mul_i32 s28, s{SW}, 10240
    s_add_u32 s28, s28, {WS_HS}
    v_add_u32 v3, s28, v2
    v_add_u32 v4, 4096, v3
    v_add_u32 v5, 8192, v3
    v_min_u32 v10, 9, v1
    v_lshlrev_b32 v10, 7, v10
    v_add_u32 v10, {WS_FLAG + FL_B1*128}, v10
    s_lshl_b32 s28, s{SW}, 13
    v_add_u32 v6, s28, v2
    s_lshl_b32 s28, s{SW}, 11
    v_add_u32 v7, s28, v2
    s_waitcnt vmcnt(0)
    """)
    DS = 176
    for j in range(8):
        if j % 2 == 0: A(f"v_lshlrev_b32 v{DS+j}, 16, v{16 + j//2}")
        else: A(f"v_and_b32 v{DS+j}, 0xffff0000, v{16 + j//2}")
    wait_all_started(A, "L_b2_st", 12, 13)
    stamp(A, opt, 1)
    HF = 16
    XV = 96
    AC = 104
    RD = 136
    def hload(tt):
        for k in range(10):
            A(f"buffer_load_dwordx4 {v(HF+40*tt+4*k,4)}, v{3 + k//4}, s[4:7], s76 offen offset:{(k%4)*1024} sc1")
        A(f"s_add_u32 s76, s76, {40960 if tt == 0 else 3*40960}")
    def xload(tt):
        A(f"buffer_load_dwordx2 {v(XV+4*tt,2)}, v8, s[16:19], s80 offen\nbuffer_load_dwordx2 {v(XV+4*tt+2,2)}, v8, s[16:19], s80 offen offset:32")
        A(f"s_add_u32 s80, s80, {16*1280 if tt == 0 else 48*1280}")
    A(f"s_mov_b32 s77, s79\ns_mov_b32 s78, 0\ns_add_u32 s64, s77, 1\ns_mul_i32 s76, s77, 81920\ns_mul_i32 s80, s77, {32*1280}\ns_mul_i32 s81, s77, {32*5120}")
    wait_progress(A, 78, 64, 10, 12, "L_b2_w0", sleep=2)
    hload(0); xload(0); hload(1); xload(1)
    A("s_waitcnt vmcnt(0)")
    A("L_b2_loop:")
    for tt in range(2):
        A("s_waitcnt vmcnt(14)")
        for k in range(10):
            for t in range(8):
                c = "0" if k == 0 else v(AC + 4*t, 4)
                A(f"v_mfma_f32_16x16x32_bf16 {v(AC+4*t,4)}, {r(W(t,k),4)}, {v(HF+40*tt+4*k,4)}, {c}")
        if tt == 0:
            A("s_add_u32 s64, s77, 3\ns_min_u32 s64, s64, 64")
            wait_progress(A, 78, 64, 10, 12, "L_b2_w", sleep=2)
        hload(tt)
        A("s_nop 1")
        lb = tt * 32768
        for t in range(8):
            if t == 7: A("s_nop 1")
            A(f"ds_write_b128 v6, {v(AC+4*t,4)} offset:{lb + t*1024}")
        A("s_waitcnt lgkmcnt(0)\ns_barrier")
        for w2 in range(4):
            for h2 in range(2):
                A(f"ds_read_b128 {v(RD+8*w2+4*h2,4)}, v7 offset:{lb + w2*8192 + h2*1024}")
        for j in range(8):
            if j % 2 == 0: A(f"v_lshlrev_b32 v{168+j}, 16, v{XV+4*tt + j//2}")
            else: A(f"v_and_b32 v{168+j}, 0xffff0000, v{XV+4*tt + j//2}")
        for j in range(8): A(f"v_mul_f32 v{168+j}, v{168+j}, v{DS+j}")
        for j in range(4): A(f"v_cvt_pk_bf16_f32 v{184+j}, v{168+2*j}, v{169+2*j}")
        for j in range(8):
            if j % 2 == 0: A(f"v_lshlrev_b32 v{168+j}, 16, v{184 + j//2}")
            else: A(f"v_and_b32 v{168+j}, 0xffff0000, v{184 + j//2}")
        A("s_waitcnt lgkmcnt(0)")
        for j in range(8):
            A(f"v_add_f32 v{RD+j}, v{RD+j}, v{RD+8+j}\nv_add_f32 v{RD+16+j}, v{RD+16+j}, v{RD+24+j}")
        for j in range(8):
            A(f"v_add_f32 v{RD+j}, v{RD+j}, v{RD+16+j}\nv_add_f32 v{RD+j}, v{RD+j}, v{168+j}")
        A(f"buffer_store_dwordx4 {v(RD,4)}, v9, s[32:35], s81 offen\nbuffer_store_dwordx4 {v(RD+4,4)}, v9, s[32:35], s81 offen offset:64")
        A(f"s_add_u32 s81, s81, {16*5120 if tt == 0 else 48*5120}")
        xload(tt)
    A("s_add_u32 s77, s77, 2\ns_cmp_lt_u32 s77, 64\ns_cbranch_scc1 L_b2_loop")
    stamp(A, opt, 2)
    A("s_waitcnt vmcnt(0)\ns_endpgm")

def gen_all(A, opt):
    A("L_ssm:")
    if opt.get("go", 1): wait_go(A, "L_ssm_go", 4, 5)
    A(f"""
    s_sub_u32 s75, s{SROLE}, 26
    s_lshl_b32 s75, s75, 2
    s_add_u32 s75, s75, s{SGRP}
    s_cmp_lt_u32 s75, 10
    s_cbranch_scc1 L_b1
    s_sub_u32 s75, s75, 10
    s_branch L_b2
    """)
    gen_b1(A, opt); gen_b2(A, opt)
```

```python
import sys
from asmlib import *

MiB = 1 << 20
WS_QX, WS_KX, WS_VX = 0, 24 * MiB, 48 * MiB
WS_UX = 72 * MiB
WS_UMG = 152 * MiB
WS_PX = 172 * MiB
WS_HS = 178 * MiB
WS_FLAG = 183 * MiB + 512 * 1024
WS_RING = 184 * MiB
WS_XR = 186 * MiB
ARM_BYTES = 4 * MiB
FL_PROJ, FL_PU, FL_QK, FL_VO, FL_B1 = 0, 72, 104, 136, 168
WS_STAMP = 250 * MiB
DB_POL = 20
DB_ERR = 24
DB_STAGE = 160
N_PROJ, N_PU, N_B1, N_B2 = 72, 32, 10, 10
N_BULK = N_PROJ + N_PU + N_B1 + N_B2
TIMEOUT = 400000
GO_BASE = 0

def P(i): return 36 + 2 * i
(A_X, A_MEM0, A_WQ, A_WK, A_WV, A_WO, A_SEG, B_X, B_LRE, B_LIM, B_BRE, B_BIM, B_CRE, B_CIM, B_LDT, B_DSK, OUT, DBG, WS) = range(19)
SW, SROLE, SGRP, STO = 24, 25, 26, 27

def srd(A, d, p, nbytes):
    A(f"s_mov_b32 s{d}, s{P(p)}\ns_mov_b32 s{d+1}, s{P(p)+1}\ns_mov_b32 s{d+2}, {nbytes}\ns_mov_b32 s{d+3}, 0x20000")

def tick(A):
    A(f"s_sub_u32 s{STO}, s{STO}, 1\ns_cbranch_scc1 L_fail")

def wave_min_u32(A, x):
    for ctl in ("row_shr:1 row_mask:0xf", "row_shr:2 row_mask:0xf", "row_shr:4 row_mask:0xf", "row_shr:8 row_mask:0xf",
                "row_bcast:15 row_mask:0xa", "row_bcast:31 row_mask:0xc"):
        A("s_nop 1")
        A(f"v_min_u32_dpp v{x}, v{x}, v{x} {ctl} bank_mask:0xf")

def wait_progress(A, savail, sneed, vaddr, vtmp, name, sleep=0):
    A(f"s_cmp_ge_u32 s{savail}, s{sneed}\ns_cbranch_scc1 {name}_ok")
    A(f"{name}:")
    A(f"buffer_load_dword v{vtmp}, v{vaddr}, s[4:7], 0 offen sc1\ns_waitcnt vmcnt(0)")
    wave_min_u32(A, vtmp)
    A(f"s_nop 0\nv_readlane_b32 s{savail}, v{vtmp}, 63\ns_nop 3")
    A(f"s_cmp_ge_u32 s{savail}, s{sneed}\ns_cbranch_scc1 {name}_ok")
    if sleep: A(f"s_sleep {sleep}")
    tick(A)
    A(f"s_branch {name}")
    A(f"{name}_ok:")

def wait_all_started(A, name, va, vb):
    A(f"""
    v_and_b32 v{va}, 3, v1
    v_lshlrev_b32 v{va}, 2, v{va}
    v_bfe_u32 v{vb}, v1, 2, 1
    v_lshl_add_u32 v{va}, v{vb}, 7, v{va}
    {name}:
    buffer_load_dword v{vb}, v{va}, s[8:11], 0 offen sc1
    s_waitcnt vmcnt(0)
    v_cmp_gt_u32 vcc, 32, v{vb}
    s_cbranch_vccz {name}_ok
    s_sleep 4
    """)
    tick(A)
    A(f"s_branch {name}\n{name}_ok:")

def wait_go(A, name, va, vb):
    wait_all_started(A, name + "_s", va, vb)
    A(f"""
    s_and_b32 s28, s{SGRP}, 3
    s_mul_i32 s28, s28, {6*128}
    s_add_u32 s28, s28, {WS_FLAG + GO_BASE*128 + 4}
    v_mov_b32 v{va}, s28
    {name}:
    buffer_load_dword v{vb}, v{va}, s[4:7], 0 offen sc1
    s_waitcnt vmcnt(0)
    v_cmp_eq_u32 vcc, 0, v{vb}
    s_cbranch_vccz {name}_ok
    s_sleep 8
    """)
    tick(A)
    A(f"s_branch {name}\n{name}_ok:")

def publish(A, vaddr, sval, vtmp, name, off=0):
    A(f"""
    s_cmp_eq_u32 s{SW}, 0
    s_cbranch_scc0 {name}
    v_mov_b32 v{vtmp}, {sval}
    s_mov_b64 exec, 1
    buffer_store_dword v{vtmp}, v{vaddr}, s[4:7], 0 offen offset:{off} sc1
    s_mov_b64 exec, -1
    {name}:
    """)

def stamp(A, opt, k):
    if not opt.get("stamp"): return
    A(f"""
    s_memrealtime s[96:97]
    s_memtime s[98:99]
    s_lshl_b32 s100, s2, 8
    s_add_u32 s100, s100, {WS_STAMP + 8*k}
    s_waitcnt lgkmcnt(0)
    v_mov_b32 v14, s96
    v_mov_b32 v15, s98
    s_mov_b64 exec, 1
    buffer_store_dwordx2 v[14:15], off, s[4:7], s100
    s_mov_b64 exec, -1
    """)

def prologue(A, opt):
    A(f"""
    s_cmp_ge_u32 s2, 256
    s_cbranch_scc1 L_exit
    s_load_dwordx16 s[36:51], s[0:1], 0
    s_load_dwordx16 s[52:67], s[0:1], 64
    s_load_dwordx4 s[68:71], s[0:1], 128
    s_load_dwordx2 s[72:73], s[0:1], 144
    s_getreg_b32 s{SGRP}, hwreg(HW_REG_XCC_ID)
    s_and_b32 s{SGRP}, s{SGRP}, 7
    v_and_b32 v1, 63, v0
    v_lshrrev_b32 v3, 6, v0
    v_lshlrev_b32 v2, 4, v1
    v_readfirstlane_b32 s{SW}, v3
    s_mov_b32 s{STO}, {TIMEOUT}
    s_waitcnt lgkmcnt(0)
    """)
    srd(A, 4, WS, 0x10000000)
    srd(A, 8, DBG, 256)
    A(f"""
    v_mov_b32 v8, -1
    v_mov_b32 v9, -1
    v_mov_b32 v10, -1
    v_mov_b32 v11, -1
    v_lshlrev_b32 v4, 4, v0
    s_lshl_b32 s28, s2, 14
    s_add_u32 s28, s28, {WS_RING}
    buffer_store_dwordx4 v[8:11], v4, s[4:7], s28 offen sc1
    s_add_u32 s28, s28, 4096
    buffer_store_dwordx4 v[8:11], v4, s[4:7], s28 offen sc1
    s_add_u32 s28, s28, 4096
    buffer_store_dwordx4 v[8:11], v4, s[4:7], s28 offen sc1
    s_add_u32 s28, s28, 4096
    buffer_store_dwordx4 v[8:11], v4, s[4:7], s28 offen sc1
    s_lshl_b32 s28, s2, 7
    s_add_u32 s28, s28, {WS_FLAG}
    v_mov_b32 v5, 0
    v_and_b32 v4, 31, v0
    v_lshlrev_b32 v4, 2, v4
    buffer_store_dword v5, v4, s[4:7], s28 offen sc1
    s_waitcnt vmcnt(0)
    s_barrier
    """)
    A(f"""
    s_and_b32 s28, s{SGRP}, 3
    s_lshl_b32 s28, s28, 2
    s_lshr_b32 s29, s{SGRP}, 2
    s_lshl_b32 s29, s29, 7
    s_add_u32 s28, s28, s29
    v_mov_b32 v4, s28
    v_mov_b32 v5, 1
    v_mov_b32 v3, 0
    """)
    if opt.get("cpf", 1):
        A(f"""
        s_cmp_eq_u32 s{SW}, 0
        s_cbranch_scc1 L_nocpf
        s_getpc_b64 s[32:33]
        L_pc:
        v_add_u32 v6, -64, v0
        v_lshlrev_b32 v6, 4, v6
        """)
        for i in range(19):
            A(f"v_min_u32 v7, L_code_end-L_pc-16, v6\nglobal_load_dwordx4 v[{128+4*(i%16)}:{131+4*(i%16)}], v7, s[32:33]\nv_add_u32 v6, 3072, v6")
        A("L_nocpf:")
    A(f"""
    v_cmp_eq_u32 vcc, 0, v0
    s_and_saveexec_b64 s[28:29], vcc
    s_cbranch_execz L_notick
    buffer_atomic_add v5, v4, s[8:11], 0 offen sc0
    s_waitcnt vmcnt(0)
    ds_write_b32 v3, v5
    s_waitcnt lgkmcnt(0)
    L_notick:
    s_mov_b64 exec, s[28:29]
    s_barrier
    ds_read_b32 v5, v3
    s_waitcnt lgkmcnt(0)
    v_readfirstlane_b32 s{SROLE}, v5
    s_barrier
    """)
    if opt.get("stamp"):
        stamp(A, opt, 0)
        A(f"""
        s_lshl_b32 s100, s2, 8
        s_add_u32 s100, s100, {WS_STAMP + 248}
        v_mov_b32 v14, s{SGRP}
        v_mov_b32 v15, s{SROLE}
        s_mov_b64 exec, 1
        buffer_store_dwordx2 v[14:15], off, s[4:7], s100
        s_mov_b64 exec, -1
        """)
    A(f"""
    s_cmp_lt_u32 s{SGRP}, 4
    s_cbranch_scc1 L_chainside
    s_sub_u32 s{SGRP}, s{SGRP}, 4
    s_cmp_lt_u32 s{SROLE}, 18
    s_cbranch_scc1 L_proj
    s_cmp_lt_u32 s{SROLE}, 26
    s_cbranch_scc1 L_pu
    s_cmp_lt_u32 s{SROLE}, 31
    s_cbranch_scc1 L_ssm
    s_branch L_spare
    L_chainside:
    s_cmp_lt_u32 s{SROLE}, 8
    s_cbranch_scc1 L_qk
    s_cmp_lt_u32 s{SROLE}, 16
    s_cbranch_scc1 L_vo
    """)
    A(f"""
    s_cmp_lt_u32 s{SROLE}, 26
    s_cbranch_scc1 L_red
    s_sub_u32 s75, s{SROLE}, 26
    s_lshl_b32 s75, s75, 2
    s_add_u32 s75, s75, s{SGRP}
    """)
    if opt.get("warm", 1):
        if opt.get("go", 1): wait_go(A, "L_warm_go", 4, 5)
        srd(A, 12, A_X, 2048 * 1280)
        srd(A, 16, B_X, 2048 * 1280)
        A(f"s_add_u32 s29, s75, 2\nv_lshlrev_b32 v4, 4, v0\nL_warm:\ns_mul_i32 s28, s29, 40960")
        for i in range(10):
            A(f"buffer_load_dwordx4 v[{16+8*i}:{19+8*i}], v4, s[12:15], s28 offen\nbuffer_load_dwordx4 v[{20+8*i}:{23+8*i}], v4, s[16:19], s28 offen\ns_add_u32 s28, s28, 4096")
        A("s_add_u32 s29, s29, 24\ns_cmp_lt_u32 s29, 64\ns_cbranch_scc1 L_warm\ns_waitcnt vmcnt(0)")
    A("s_cmp_lt_u32 s75, 10\ns_cbranch_scc1 L_sum")
    A("L_spare:")
    wait_all_started(A, "L_spare_w", 4, 5)
    A("s_endpgm")

def epilogue(A):
    A(f"""
    L_fail:
    s_mov_b64 exec, 1
    v_mov_b32 v4, {DB_ERR}
    v_mov_b32 v5, 1
    buffer_atomic_add v5, v4, s[8:11], 0 offen
    s_waitcnt vmcnt(0)
    L_exit:
    s_endpgm
    L_code_end:
    """)

def gen_proj(A, opt):
    A("L_proj:")
    if not opt.get("proj", 1):
        A("s_endpgm"); return
    A(f"""
    s_mul_i32 s75, s{SGRP}, 6
    s_add_u32 s75, s75, s{SROLE}
    s_mov_b32 s74, {WS_VX}
    s_add_u32 s83, s75, 48
    s_mov_b32 s12, s{P(A_WV)}
    s_mov_b32 s13, s{P(A_WV)+1}
    s_cmp_lt_u32 s{SROLE}, 6
    s_cbranch_scc1 L_proj_m
    s_mov_b32 s74, {WS_KX}
    s_sub_u32 s75, s75, 6
    s_add_u32 s83, s75, 24
    s_mov_b32 s12, s{P(A_WK)}
    s_mov_b32 s13, s{P(A_WK)+1}
    s_cmp_lt_u32 s{SROLE}, 12
    s_cbranch_scc1 L_proj_m
    s_mov_b32 s74, {WS_QX}
    s_sub_u32 s75, s75, 6
    s_mov_b32 s83, s75
    s_mov_b32 s12, s{P(A_WQ)}
    s_mov_b32 s13, s{P(A_WQ)+1}
    L_proj_m:
    s_mov_b32 s14, {640*6144*2}
    s_mov_b32 s15, 0x20000
    """)
    srd(A, 16, A_X, 2048 * 1280)
    def W(t, ks):
        i = (t * 20 + ks) * 4
        return 256 + i if i < 256 else 192 + (i - 256)
    A(f"""
    v_lshrrev_b32 v3, 5, v1
    v_mul_u32_u24 v5, 12288, v3
    s_lshl_b32 s28, s75, 9
    s_mul_i32 s29, s{SW}, {16*12288}
    s_add_u32 s28, s28, s29
    v_add_u32 v5, s28, v5
    v_and_b32 v4, 31, v1
    v_lshlrev_b32 v3, 1, v3
    v_xor_b32 v4, v4, v3
    """)
    for k in range(4):
        A(f"v_xor_b32 v3, {4*(k&1) + 8*(k>>1)}, v4\nv_lshl_add_u32 v{48+k}, v3, 4, v5")
    A(f"""
    v_lshrrev_b32 v4, 4, v1
    v_lshlrev_b32 v4, 3, v4
    v_bfe_u32 v5, v1, 2, 2
    v_add_u32 v4, v4, v5
    v_lshlrev_b32 v4, 9, v4
    v_and_b32 v5, 3, v1
    v_lshl_add_u32 v4, v5, 3, v4
    v_bfe_u32 v5, v1, 2, 3
    s_lshl_b32 s28, s{SW}, 2
    v_xor_b32 v5, s28, v5
    s_lshl_b32 s30, s{SW}, 13
    """)
    for t in range(4):
        A(f"v_xor_b32 v3, {t}, v5\nv_lshl_add_u32 v{52+t}, v3, 5, v4\nv_add_u32 v{56+t}, 0x10000, v{52+t}")
    def w_issue(c):
        for i in range(8):
            A(f"s_add_u32 m0, s30, {(c % NBW) * 32768 + i * 1024}")
            A(f"s_mov_b32 s31, {(c * 64 + 2 * i) * 12288}")
            A(f"buffer_load_dwordx4 v{48 + (i&1) + 2*(i>>2)}, s[12:15], s31 offen lds")
    NBW = 4
    if opt.get("stage", 0):
        A(f"""
        s_lshl_b32 s28, s{SGRP}, 2
        s_add_u32 s28, s28, {DB_STAGE}
        v_mov_b32 v7, s28
        s_cmp_lt_u32 s{SROLE}, 6
        s_cbranch_scc1 L_proj_sg
        L_proj_sw:
        buffer_load_dword v6, v7, s[8:11], 0 offen sc1
        s_waitcnt vmcnt(0)
        v_cmp_eq_u32 vcc, 0, v6
        s_cbranch_vccz L_proj_sg
        s_sleep 6
        """)
        tick(A)
        A("s_branch L_proj_sw\nL_proj_sg:")
    if opt.get("xtouch", 1):
        A(f"s_and_b32 s28, s{SROLE}, 3\ns_mul_i32 s28, s28, 32768\nv_lshlrev_b32 v6, 4, v0")
        for i in range(8): A(f"buffer_load_dwordx4 v[{16+4*i}:{19+4*i}], v6, s[16:19], s28 offen\ns_add_u32 s28, s28, 4096")
    for c in range(3): w_issue(c)
    for c in range(10):
        rem = min(9, c + 2) - c
        A(f"s_waitcnt vmcnt({8*rem})\ns_barrier")
        if c == opt.get("stagec", 6) and opt.get("stage", 0):
            A(f"s_or_b32 s28, s{SROLE}, s{SW}\ns_cmp_eq_u32 s28, 0\ns_cbranch_scc0 L_proj_ns2\nv_mov_b32 v6, 1\nbuffer_store_dword v6, v7, s[8:11], 0 offen sc1\nL_proj_ns2:")
        if c + 3 < 10: w_issue(c + 3)
        base = (c % 4) * 32768
        vb, boff = (52, base) if base < 65536 else (56, base - 65536)
        for k2 in range(2):
            for t in range(4):
                for u in range(2):
                    A(f"ds_read_b64_tr_b16 {r(W(t, 2*c+k2) + 2*u, 2)}, v{vb+t} offset:{boff + (32*k2 + 4*u) * 512}")
            A("s_waitcnt lgkmcnt(0)")
    A("s_barrier")
    stamp(A, opt, 1)
    A(f"""
    v_lshrrev_b32 v4, 3, v1
    v_and_b32 v3, 7, v1
    v_xor_b32 v3, v3, v4
    v_lshlrev_b32 v3, 4, v3
    v_mul_u32_u24 v4, 1280, v4
    v_add_u32 v3, v3, v4
    s_mul_i32 s30, s{SW}, 10240
    v_add_u32 v3, s30, v3
    """)
    A(f"""
    v_and_b32 v4, 7, v1
    v_lshrrev_b32 v5, 4, v1
    v_xor_b32 v5, v5, v4
    v_lshlrev_b32 v5, 4, v5
    v_lshl_add_u32 v5, v4, 7, v5
    v_bfe_u32 v4, v1, 3, 1
    v_mul_u32_u24 v4, 10240, v4
    v_add_u32 v88, v5, v4
    v_xor_b32 v89, 64, v88
    """)
    for j in range(2):
        A(f"""
        s_lshl_b32 s28, s75, 3
        s_lshl_b32 s29, s{SW}, 1
        s_add_u32 s28, s28, s29
        s_add_u32 s28, s28, {j}
        s_mul_i32 s29, s28, 43691
        s_lshr_b32 s29, s29, 18
        s_mul_i32 s31, s29, 6
        s_sub_u32 s28, s28, s31
        s_mul_i32 s29, s29, 12288
        s_lshl_b32 s28, s28, 10
        s_add_u32 s28, s28, s29
        s_add_u32 s28, s28, s74
        v_add_u32 v{6+j}, s28, v2
        v_add_u32 v{8+j}, 6144, v{6+j}
        """)
    A(f"s_lshl_b32 s28, s83, 7\ns_add_u32 s28, s28, {WS_FLAG}\nv_mov_b32 v10, s28")

    ACC = 16
    FR = 48
    PK = 80
    def acc(tt, t): return ACC + (tt * 4 + t) * 4
    def x_issue_one(i):
        A(f"s_add_u32 m0, s80, {i * 1024 - i * 128}")
        A("s_nop 0")
        A(f"buffer_load_dwordx4 v3, s[16:19], s78 offen offset:{i*128} lds")
    def rd(q, nxt):
        tt, ks = divmod(q, 20)
        base = (90 if nxt else 11) + (ks & 1)
        return f"ds_read_b128 {v(FR + 4*(q%8), 4)}, v{base} offset:{tt*20480 + (ks>>1)*1024}"
    A("s_mov_b32 s77, 0\ns_mov_b32 s78, 0\ns_mov_b32 s80, s30\ns_mov_b32 s76, 0")
    for i in range(10): x_issue_one(i)
    A("s_mov_b32 s78, 40960\ns_add_u32 s80, s30, 40960")
    for i in range(10): x_issue_one(i)
    A("s_mov_b32 s78, 81920\ns_mov_b32 s79, 81920\ns_add_u32 s80, s30, 81920\ns_mov_b32 s82, 40960")
    A("v_mov_b32 v11, v88\nv_mov_b32 v12, v89\nv_add_u32 v90, 40960, v88\nv_add_u32 v91, 40960, v89")
    wait_all_started(A, "L_proj_st", 4, 5)
    A("s_barrier")
    stamp(A, opt, 3)
    PRE = 6
    for q in range(PRE): A(rd(q, False))
    def epi(tt, vaddr0, soff):
        L = []
        for j in range(2):
            for h2 in range(2):
                t = 2 * j + h2
                L.append(f"v_cvt_pk_bf16_f32 v{PK+4*j+2*h2}, v{acc(tt,t)}, v{acc(tt,t)+1}")
                L.append(f"v_cvt_pk_bf16_f32 v{PK+4*j+2*h2+1}, v{acc(tt,t)+2}, v{acc(tt,t)+3}")
            L.append(f"buffer_store_dwordx4 {v(PK+4*j,4)}, v{vaddr0+j}, s[4:7], {soff} offen {'' if opt.get('plainst') else 'sc1'}")
        return L
    e1 = epi(1, 8, "s81")
    publish(A, 10, "1", 13, "L_proj_go", off=4)
    A("s_mov_b32 s81, 0\ns_mov_b32 s85, 0")
    A("L_proj_loop:")
    fill = {}
    def put(slot, ins): fill.setdefault(slot, []).append(ins)
    for i, ins in enumerate(e1): put(62 + i, ins)
    for i, ins in enumerate(epi(0, 6, "s76")): put(89 + i, ins)
    dma_slots = [2 + 6 * i for i in range(10)]
    for q in range(40):
        tt, ks = divmod(q, 20)
        qn = q + PRE
        if qn == 40:
            A(f"s_sub_u32 s84, s77, 2\ns_cmp_ge_u32 s77, {opt.get('strict', 12)}\ns_cbranch_scc1 L_proj_len\ns_mov_b32 s84, s77\ns_waitcnt vmcnt(2)\nL_proj_len:")
            A("s_waitcnt vmcnt(18)\ns_barrier")
        A(rd(qn % 40, qn >= 40))
        A(f"s_waitcnt lgkmcnt({PRE})")
        for t in range(4):
            c = "0" if ks == 0 else v(acc(tt, t), 4)
            A(f"v_mfma_f32_16x16x32_bf16 {v(acc(tt,t),4)}, {r(W(t,ks),4)}, {v(FR+4*(q%8),4)}, {c}")
            slot = 4 * q + t
            for ins in fill.get(slot, []): A(ins)
            if slot in dma_slots and not opt.get('nodma'): x_issue_one(dma_slots.index(slot))
            if slot == 141 and not opt.get('nopub'):
                A("s_max_u32 s85, s85, s84")
                publish(A, 10, "s85", 13, "L_proj_nopub")
            if slot == 145: A("s_mov_b32 s81, s76\ns_add_u32 s76, s76, 393216")
            if slot == 146: A("s_add_u32 s78, s78, 40960\ns_add_u32 s79, s79, 40960")
            if slot == 147: A(f"s_cmp_eq_u32 s79, {4*40960}\ns_cselect_b32 s79, 0, s79")
            if slot == 149: A(f"s_add_u32 s80, s30, s79\ns_add_u32 s82, s82, 40960")
            if slot == 150: A(f"s_cmp_eq_u32 s82, {4*40960}\ns_cselect_b32 s82, 0, s82")
            if slot == 157: A("v_mov_b32 v11, v90\nv_mov_b32 v12, v91")
            if slot == 158: A("v_add_u32 v90, s82, v88\nv_add_u32 v91, s82, v89")
    A(f"""
    s_add_u32 s77, s77, 1
    s_sub_u32 s28, s77, {opt.get('flush', 2) + 1}
    s_cmp_lt_u32 s28, {63 - opt.get('flush', 2)}
    s_cbranch_scc1 L_proj_loop
    s_nop 7
    """)
    for ins in e1: A(ins)
    A("s_mov_b32 s85, s77\ns_waitcnt vmcnt(0)\ns_barrier")
    publish(A, 10, "s77", 13, "L_proj_done")
    if opt.get("stamp"):
        A("s_cmp_eq_u32 s77, 1\ns_cbranch_scc0 L_proj_ns")
        stamp(A, opt, 4)
        A("L_proj_ns:")
    A("s_cmp_lt_u32 s77, 64\ns_cbranch_scc1 L_proj_loop\ns_waitcnt lgkmcnt(0)")
    stamp(A, opt, 2)
    A("s_branch L_xo")

def gen_pu(A, opt):
    A("L_pu:")
    if not opt.get("pu", 1):
        A("s_endpgm"); return
    A(f"s_lshl_b32 s75, s{SGRP}, 3\ns_add_u32 s75, s75, s{SROLE}\ns_sub_u32 s75, s75, 18")
    srd(A, 12, A_WO, 6144 * 1280)
    def W(t, f): return 256 + (t * 6 + f) * 4
    A(f"s_mul_i32 s30, s{SW}, 10240\ns_mul_i32 s74, s75, 245760\ns_add_u32 s74, s74, s30")
    for i in range(10):
        A(f"""
        v_add_u32 v3, {64*i}, v1
        v_mul_u32_u24 v4, 52429, v3
        v_lshrrev_b32 v4, 22, v4
        v_lshlrev_b32 v4, 1, v4
        v_add_u32 v5, v4, v4
        v_add_u32 v5, v5, v5
        """)
        A(f"v_xor_b32 v3, v3, v4\nv_lshlrev_b32 v{16+i}, 4, v3")
    A(f"""
    v_lshrrev_b32 v4, 4, v1
    v_lshlrev_b32 v4, 2, v4
    v_bfe_u32 v5, v1, 2, 2
    v_add_u32 v4, v4, v5
    v_mul_u32_u24 v4, 1280, v4
    v_and_b32 v5, 3, v1
    v_lshl_add_u32 v4, v5, 3, v4
    v_bfe_u32 v5, v1, 2, 3
    s_mul_i32 s28, s{SW}, 10
    """)
    for t in range(10):
        A(f"s_add_u32 s29, s28, {t}\nv_xor_b32 v3, s29, v5\nv_lshl_add_u32 v{26+t}, v3, 5, v4")
    def w_issue(f):
        A(f"s_add_u32 s31, s74, {f * 40960}")
        for i in range(10):
            A(f"s_add_u32 m0, s30, {(f % 4) * 40960 + i * 1024}\ns_nop 0")
            A(f"buffer_load_dwordx4 v{16+i}, s[12:15], s31 offen lds")
    for f in range(3): w_issue(f)
    for f in range(6):
        rem = min(5, f + 2) - f
        A(f"s_waitcnt vmcnt({10*rem})\ns_barrier")
        if f + 3 < 6: w_issue(f + 3)
        for t in range(10):
            A(f"v_add_u32 v{3 + t%2}, {(f % 4) * 40960}, v{26+t}")
            for u in range(2):
                A(f"ds_read_b64_tr_b16 {r(W(t, f) + 2*u, 2)}, v{3 + t%2} offset:{16*u*1280}")
            if t % 4 == 3 or t == 9: A("s_waitcnt lgkmcnt(0)")
    stamp(A, opt, 1)
    A(f"""
    s_mul_i32 s28, s75, 12288
    s_add_u32 s28, s28, {WS_VX}
    v_add_u32 v6, s28, v2
    v_add_u32 v7, 4096, v6
    v_add_u32 v8, 8192, v6
    s_lshl_b32 s28, s75, 10
    s_mul_i32 s29, s{SW}, 327680
    s_add_u32 s28, s28, s29
    v_add_u32 v9, s28, v2
    s_lshl_b32 s28, s75, 7
    s_add_u32 s28, s28, {WS_FLAG + FL_PU*128}
    v_mov_b32 v10, s28
    """)
    wait_all_started(A, "L_pu_st", 4, 5)
    A(f"""
    s_mul_i32 s28, s75, 6
    v_and_b32 v11, 1, v1
    v_mul_u32_u24 v11, 5, v11
    v_add_u32 v11, s28, v11
    v_lshrrev_b32 v11, 3, v11
    v_lshlrev_b32 v11, 7, v11
    v_add_u32 v11, {WS_FLAG + 48*128}, v11
    s_mov_b32 s77, 0
    s_mov_b32 s76, 0
    s_mov_b32 s78, {WS_UX}
    s_mov_b32 s79, 0
    """)
    VB = 32
    AC = 128
    PK = 144
    def vload(par):
        for q in range(12):
            A(f"buffer_load_dwordx4 {v(VB+48*par+4*q,4)}, v{6+q//4}, s[4:7], s76 offen offset:{(q%4)*1024} sc1")
        A("s_add_u32 s76, s76, 393216")
    def epi(t):
        a0 = AC + (t % 2) * 8; pk = PK + (t % 2) * 4
        return [f"v_cvt_pk_bf16_f32 v{pk}, v{a0}, v{a0+1}", f"v_cvt_pk_bf16_f32 v{pk+1}, v{a0+2}, v{a0+3}",
                f"v_cvt_pk_bf16_f32 v{pk+2}, v{a0+4}, v{a0+5}", f"v_cvt_pk_bf16_f32 v{pk+3}, v{a0+6}, v{a0+7}",
                f"s_add_u32 s81, s78, {t*32768}",
                f"buffer_store_dwordx4 {v(pk,4)}, v9, s[4:7], s81 offen sc1"]
    A("s_mov_b32 s80, 1")
    wait_progress(A, 79, 80, 11, 12, "L_pu_w0")
    stamp(A, opt, 3)
    vload(0)
    A("s_waitcnt vmcnt(0)")
    stamp(A, opt, 4)
    A("L_pu_loop:")
    for par in range(2):
        A(f"s_add_u32 s80, s77, 2\ns_min_u32 s80, s80, 64\ns_mov_b32 s82, 0\ns_cmp_ge_u32 s79, s80\ns_cbranch_scc0 L_pu_nopf{par}\ns_mov_b32 s82, 1")
        vload(1 - par)
        A(f"L_pu_nopf{par}:")
        A(f"buffer_load_dword v12, v11, s[4:7], 0 offen sc1")
        for t in range(10):
            a0 = AC + (t % 2) * 8
            pend = epi(t - 1) if t > 0 else []
            n = 0
            for f in range(6):
                for tt in range(2):
                    c = "0" if f == 0 else v(a0 + 4*tt, 4)
                    A(f"v_mfma_f32_16x16x32_bf16 {v(a0+4*tt,4)}, {v(VB+48*par+4*(tt*6+f),4)}, {r(W(t,f),4)}, {c}")
                    n += 1
                    if n >= 8:
                        for _ in range(2):
                            if pend: A(pend.pop(0))
        A("s_nop 7\ns_nop 3")
        for ins in epi(9): A(ins)
        A(f"""
        s_add_u32 s78, s78, 1310720
        s_mov_b32 s84, s77
        s_add_u32 s77, s77, 1
        s_cmp_gt_u32 s77, {opt.get('pustrict', 8)}
        s_cbranch_scc1 L_pu_len{par}
        s_mov_b32 s84, s77
        s_waitcnt vmcnt(0)
        L_pu_len{par}:
        s_waitcnt vmcnt(10)
        s_barrier
        """)
        publish(A, 10, "s84", 13, f"L_pu_nopub{par}")
        if opt.get("stamp") and par == 0:
            A("s_cmp_eq_u32 s77, 1\ns_cbranch_scc0 L_pu_ns")
            stamp(A, opt, 5)
            A("L_pu_ns:")
        A(f"""
        v_readlane_b32 s28, v12, 0
        v_readlane_b32 s29, v12, 1
        s_nop 3
        s_min_u32 s28, s28, s29
        s_max_u32 s79, s79, s28
        s_cmp_eq_u32 s82, 1
        s_cbranch_scc1 L_pu_have{par}
        """)
        wait_progress(A, 79, 80, 11, 12, f"L_pu_w{par+1}")
        vload(1 - par)
        A("s_waitcnt vmcnt(0)")
        A(f"L_pu_have{par}:")
    A("s_cmp_lt_u32 s77, 64\ns_cbranch_scc1 L_pu_loop")
    A("s_waitcnt vmcnt(0)\ns_barrier")
    publish(A, 10, "64", 13, "L_pu_end")
    stamp(A, opt, 2)
    A("s_waitcnt vmcnt(0)\ns_endpgm")

def stub(A, name):
    A(f"{name}:\ns_endpgm")

def build(opt):
    import kchain
    A = Asm()
    prologue(A, opt)
    gen_proj(A, opt)
    gen_pu(A, opt)
    kchain.gen_all(A, opt)
    try:
        import kssm
        kssm.gen_all(A, opt)
    except ImportError:
        stub(A, "L_ssm")
    epilogue(A)
    return wrap(A.text(), 256)

if __name__ == "__main__":
    out = sys.argv[1] if len(sys.argv) > 1 else "k.s"
    opt = {}
    for a_ in sys.argv[2:]:
        k_, v_ = a_.split("="); opt[k_] = int(v_)
    open(out, "w").write(build(opt))
```

```python
import sys
from asmlib import *

MiB = 1 << 20
WS_QX, WS_KX, WS_VX = 0, 24 * MiB, 48 * MiB
WS_UX = 72 * MiB
WS_UMG = 152 * MiB
WS_PX = 172 * MiB
WS_HS = 178 * MiB
WS_FLAG = 183 * MiB + 512 * 1024
WS_RING = 184 * MiB
WS_XR = 186 * MiB
ARM_BYTES = 4 * MiB
FL_PROJ, FL_PU, FL_QK, FL_VO, FL_B1 = 0, 72, 104, 136, 168
WS_STAMP = 250 * MiB
DB_ARM = 16
DB_POL = 20
DB_ERR = 24
DB_STAGE = 160
N_PROJ, N_PU, N_B1, N_B2 = 72, 32, 10, 10
N_BULK = N_PROJ + N_PU + N_B1 + N_B2
TIMEOUT = 400000
GO_BASE = 0

def P(i): return 36 + 2 * i
(A_X, A_MEM0, A_WQ, A_WK, A_WV, A_WO, A_SEG, B_X, B_LRE, B_LIM, B_BRE, B_BIM, B_CRE, B_CIM, B_LDT, B_DSK, OUT, DBG, WS) = range(19)
SW, SROLE, SGRP, STO = 24, 25, 26, 27

def srd(A, d, p, nbytes):
    A(f"s_mov_b32 s{d}, s{P(p)}\ns_mov_b32 s{d+1}, s{P(p)+1}\ns_mov_b32 s{d+2}, {nbytes}\ns_mov_b32 s{d+3}, 0x20000")

def tick(A):
    A(f"s_sub_u32 s{STO}, s{STO}, 1\ns_cbranch_scc1 L_fail")

def wave_min_u32(A, x):
    for ctl in ("row_shr:1 row_mask:0xf", "row_shr:2 row_mask:0xf", "row_shr:4 row_mask:0xf", "row_shr:8 row_mask:0xf",
                "row_bcast:15 row_mask:0xa", "row_bcast:31 row_mask:0xc"):
        A("s_nop 1")
        A(f"v_min_u32_dpp v{x}, v{x}, v{x} {ctl} bank_mask:0xf")

def wait_progress(A, savail, sneed, vaddr, vtmp, name, sleep=0):
    A(f"s_cmp_ge_u32 s{savail}, s{sneed}\ns_cbranch_scc1 {name}_ok")
    A(f"{name}:")
    A(f"buffer_load_dword v{vtmp}, v{vaddr}, s[4:7], 0 offen sc1\ns_waitcnt vmcnt(0)")
    wave_min_u32(A, vtmp)
    A(f"s_nop 0\nv_readlane_b32 s{savail}, v{vtmp}, 63\ns_nop 3")
    A(f"s_cmp_ge_u32 s{savail}, s{sneed}\ns_cbranch_scc1 {name}_ok")
    if sleep: A(f"s_sleep {sleep}")
    tick(A)
    A(f"s_branch {name}")
    A(f"{name}_ok:")

def wait_all_started(A, name, va, vb):
    A(f"""
    v_and_b32 v{va}, 3, v1
    v_lshlrev_b32 v{va}, 2, v{va}
    v_bfe_u32 v{vb}, v1, 2, 1
    v_lshl_add_u32 v{va}, v{vb}, 7, v{va}
    v_cmp_lt_u32 vcc, 7, v1
    v_mov_b32 v{vb}, {DB_ARM}
    s_nop 0
    v_cndmask_b32 v{va}, v{va}, v{vb}, vcc
    {name}:
    buffer_load_dword v{vb}, v{va}, s[8:11], 0 offen sc1
    s_waitcnt vmcnt(0)
    v_cmp_gt_u32 vcc, 32, v{vb}
    v_readlane_b32 s28, v{vb}, 8
    s_cbranch_vccnz {name}_no
    s_cmp_ge_u32 s28, 64
    s_cbranch_scc1 {name}_ok
    {name}_no:
    s_sleep 4
    """)
    tick(A)
    A(f"s_branch {name}\n{name}_ok:")

def wait_go(A, name, va, vb):
    wait_all_started(A, name + "_s", va, vb)
    A(f"""
    s_and_b32 s28, s{SGRP}, 3
    s_mul_i32 s28, s28, {6*128}
    s_add_u32 s28, s28, {WS_FLAG + GO_BASE*128 + 4}
    v_mov_b32 v{va}, s28
    {name}:
    buffer_load_dword v{vb}, v{va}, s[4:7], 0 offen sc1
    s_waitcnt vmcnt(0)
    v_cmp_eq_u32 vcc, 0, v{vb}
    s_cbranch_vccz {name}_ok
    s_sleep 8
    """)
    tick(A)
    A(f"s_branch {name}\n{name}_ok:")

def publish(A, vaddr, sval, vtmp, name, off=0):
    A(f"""
    s_cmp_eq_u32 s{SW}, 0
    s_cbranch_scc0 {name}
    v_mov_b32 v{vtmp}, {sval}
    s_mov_b64 exec, 1
    buffer_store_dword v{vtmp}, v{vaddr}, s[4:7], 0 offen offset:{off} sc1
    s_mov_b64 exec, -1
    {name}:
    """)

def stamp(A, opt, k):
    if not opt.get("stamp"): return
    A(f"""
    s_memrealtime s[96:97]
    s_memtime s[98:99]
    s_lshl_b32 s100, s2, 8
    s_add_u32 s100, s100, {WS_STAMP + 8*k}
    s_waitcnt lgkmcnt(0)
    v_mov_b32 v14, s96
    v_mov_b32 v15, s98
    s_mov_b64 exec, 1
    buffer_store_dwordx2 v[14:15], off, s[4:7], s100
    s_mov_b64 exec, -1
    """)

def prologue(A, opt):
    A(f"""
    s_cmp_ge_u32 s2, 256
    s_cbranch_scc1 L_exit
    s_load_dwordx16 s[36:51], s[0:1], 0
    s_load_dwordx16 s[52:67], s[0:1], 64
    s_load_dwordx4 s[68:71], s[0:1], 128
    s_load_dwordx2 s[72:73], s[0:1], 144
    s_getreg_b32 s{SGRP}, hwreg(HW_REG_XCC_ID)
    s_and_b32 s{SGRP}, s{SGRP}, 7
    v_and_b32 v1, 63, v0
    v_lshrrev_b32 v3, 6, v0
    v_lshlrev_b32 v2, 4, v1
    v_readfirstlane_b32 s{SW}, v3
    s_mov_b32 s{STO}, {TIMEOUT}
    s_waitcnt lgkmcnt(0)
    """)
    srd(A, 4, WS, 0x10000000)
    srd(A, 8, DBG, 256)
    stamp(A, opt, 7)
    A(f"""
    s_and_b32 s28, s{SGRP}, 3
    s_lshl_b32 s28, s28, 2
    s_lshr_b32 s29, s{SGRP}, 2
    s_lshl_b32 s29, s29, 7
    s_add_u32 s28, s28, s29
    v_mov_b32 v4, s28
    v_mov_b32 v5, 1
    v_mov_b32 v3, 0
    """)
    if opt.get("cpf", 1):
        A(f"""
        s_cmp_eq_u32 s{SW}, 0
        s_cbranch_scc1 L_nocpf
        s_getpc_b64 s[32:33]
        L_pc:
        v_add_u32 v6, -64, v0
        v_lshlrev_b32 v6, 4, v6
        """)
        for i in range(19):
            A(f"v_min_u32 v7, L_code_end-L_pc-16, v6\nglobal_load_dwordx4 v[{128+4*(i%16)}:{131+4*(i%16)}], v7, s[32:33]\nv_add_u32 v6, 3072, v6")
        A("L_nocpf:")
    A(f"""
    v_cmp_eq_u32 vcc, 0, v0
    s_and_saveexec_b64 s[28:29], vcc
    s_cbranch_execz L_notick
    buffer_atomic_add v5, v4, s[8:11], 0 offen sc0
    s_waitcnt vmcnt(0)
    ds_write_b32 v3, v5
    s_waitcnt lgkmcnt(0)
    L_notick:
    s_mov_b64 exec, s[28:29]
    s_barrier
    ds_read_b32 v5, v3
    s_waitcnt lgkmcnt(0)
    v_readfirstlane_b32 s{SROLE}, v5
    s_barrier
    """)
    if opt.get("stamp"):
        stamp(A, opt, 0)
        A(f"""
        s_lshl_b32 s100, s2, 8
        s_add_u32 s100, s100, {WS_STAMP + 248}
        v_mov_b32 v14, s{SGRP}
        v_mov_b32 v15, s{SROLE}
        s_mov_b64 exec, 1
        buffer_store_dwordx2 v[14:15], off, s[4:7], s100
        s_mov_b64 exec, -1
        """)
    A(f"""
    s_cmp_ge_u32 s{SROLE}, 32
    s_cbranch_scc1 L_exit
    s_cmp_lt_u32 s{SGRP}, 4
    s_cbranch_scc1 L_chainside
    s_sub_u32 s{SGRP}, s{SGRP}, 4
    s_cmp_lt_u32 s{SROLE}, 18
    s_cbranch_scc1 L_proj
    s_cmp_lt_u32 s{SROLE}, 26
    s_cbranch_scc1 L_pu
    s_cmp_lt_u32 s{SROLE}, 31
    s_cbranch_scc1 L_ssm
    s_branch L_spare
    L_chainside:
    s_cmp_lt_u32 s{SROLE}, 8
    s_cbranch_scc1 L_qk
    s_cmp_lt_u32 s{SROLE}, 16
    s_cbranch_scc1 L_vo
    """)
    A(f"""
    s_sub_u32 s29, s{SROLE}, 16
    s_lshl_b32 s29, s29, 2
    s_add_u32 s29, s29, s{SGRP}
    v_mov_b32 v8, -1
    v_mov_b32 v9, -1
    v_mov_b32 v10, -1
    v_mov_b32 v11, -1
    v_lshlrev_b32 v4, 4, v0
    s_mul_i32 s28, s29, 49152
    s_add_u32 s28, s28, {WS_RING}
    """)
    for i in range(12): A("buffer_store_dwordx4 v[8:11], v4, s[4:7], s28 offen sc1\ns_add_u32 s28, s28, 4096")
    A(f"""
    s_lshl_b32 s28, s29, 9
    s_add_u32 s28, s28, {WS_FLAG}
    v_mov_b32 v5, 0
    v_and_b32 v4, 127, v0
    v_lshlrev_b32 v4, 2, v4
    buffer_store_dword v5, v4, s[4:7], s28 offen sc1
    s_waitcnt vmcnt(0)
    s_barrier
    s_cmp_eq_u32 s{SW}, 0
    s_cbranch_scc0 L_armed
    v_mov_b32 v4, {DB_ARM}
    v_mov_b32 v5, 1
    s_mov_b64 exec, 1
    buffer_atomic_add v5, v4, s[8:11], 0 offen
    s_mov_b64 exec, -1
    L_armed:
    s_cmp_lt_u32 s{SROLE}, 26
    s_cbranch_scc1 L_red
    s_sub_u32 s75, s{SROLE}, 26
    s_lshl_b32 s75, s75, 2
    s_add_u32 s75, s75, s{SGRP}
    """)
    if opt.get("warm", 1):
        if opt.get("go", 1): wait_go(A, "L_warm_go", 4, 5)
        srd(A, 12, A_X, 2048 * 1280)
        srd(A, 16, B_X, 2048 * 1280)
        A(f"s_add_u32 s29, s75, 2\nv_lshlrev_b32 v4, 4, v0\nL_warm:\ns_mul_i32 s28, s29, 40960")
        for i in range(10):
            A(f"buffer_load_dwordx4 v[{16+8*i}:{19+8*i}], v4, s[12:15], s28 offen\nbuffer_load_dwordx4 v[{20+8*i}:{23+8*i}], v4, s[16:19], s28 offen\ns_add_u32 s28, s28, 4096")
        A("s_add_u32 s29, s29, 24\ns_cmp_lt_u32 s29, 64\ns_cbranch_scc1 L_warm\ns_waitcnt vmcnt(0)")
    A("s_cmp_lt_u32 s75, 10\ns_cbranch_scc1 L_sum")
    A("L_spare:")
    wait_all_started(A, "L_spare_w", 4, 5)
    A("s_endpgm")

def epilogue(A):
    A(f"""
    L_fail:
    s_mov_b64 exec, 1
    v_mov_b32 v4, {DB_ERR}
    v_mov_b32 v5, 1
    buffer_atomic_add v5, v4, s[8:11], 0 offen
    s_waitcnt vmcnt(0)
    L_exit:
    s_endpgm
    L_code_end:
    """)

def gen_proj(A, opt):
    A("L_proj:")
    if not opt.get("proj", 1):
        A("s_endpgm"); return
    A(f"""
    s_mul_i32 s75, s{SGRP}, 6
    s_add_u32 s75, s75, s{SROLE}
    s_mov_b32 s74, {WS_VX}
    s_add_u32 s83, s75, 48
    s_mov_b32 s12, s{P(A_WV)}
    s_mov_b32 s13, s{P(A_WV)+1}
    s_cmp_lt_u32 s{SROLE}, 6
    s_cbranch_scc1 L_proj_m
    s_mov_b32 s74, {WS_KX}
    s_sub_u32 s75, s75, 6
    s_add_u32 s83, s75, 24
    s_mov_b32 s12, s{P(A_WK)}
    s_mov_b32 s13, s{P(A_WK)+1}
    s_cmp_lt_u32 s{SROLE}, 12
    s_cbranch_scc1 L_proj_m
    s_mov_b32 s74, {WS_QX}
    s_sub_u32 s75, s75, 6
    s_mov_b32 s83, s75
    s_mov_b32 s12, s{P(A_WQ)}
    s_mov_b32 s13, s{P(A_WQ)+1}
    L_proj_m:
    s_mov_b32 s14, {640*6144*2}
    s_mov_b32 s15, 0x20000
    """)
    srd(A, 16, A_X, 2048 * 1280)
    def W(t, ks):
        i = (t * 20 + ks) * 4
        return 256 + i if i < 256 else 192 + (i - 256)
    A(f"""
    v_lshrrev_b32 v3, 5, v1
    v_mul_u32_u24 v5, 12288, v3
    s_lshl_b32 s28, s75, 9
    s_mul_i32 s29, s{SW}, {16*12288}
    s_add_u32 s28, s28, s29
    v_add_u32 v5, s28, v5
    v_and_b32 v4, 31, v1
    v_lshlrev_b32 v3, 1, v3
    v_xor_b32 v4, v4, v3
    """)
    for k in range(4):
        A(f"v_xor_b32 v3, {4*(k&1) + 8*(k>>1)}, v4\nv_lshl_add_u32 v{48+k}, v3, 4, v5")
    A(f"""
    v_lshrrev_b32 v4, 4, v1
    v_lshlrev_b32 v4, 3, v4
    v_bfe_u32 v5, v1, 2, 2
    v_add_u32 v4, v4, v5
    v_lshlrev_b32 v4, 9, v4
    v_and_b32 v5, 3, v1
    v_lshl_add_u32 v4, v5, 3, v4
    v_bfe_u32 v5, v1, 2, 3
    s_lshl_b32 s28, s{SW}, 2
    v_xor_b32 v5, s28, v5
    s_lshl_b32 s30, s{SW}, 13
    """)
    for t in range(4):
        A(f"v_xor_b32 v3, {t}, v5\nv_lshl_add_u32 v{52+t}, v3, 5, v4\nv_add_u32 v{56+t}, 0x10000, v{52+t}")
    def w_issue(c):
        for i in range(8):
            A(f"s_add_u32 m0, s30, {(c % NBW) * 32768 + i * 1024}")
            A(f"s_mov_b32 s31, {(c * 64 + 2 * i) * 12288}")
            A(f"buffer_load_dwordx4 v{48 + (i&1) + 2*(i>>2)}, s[12:15], s31 offen lds")
    NBW = 4
    if opt.get("stage", 0):
        A(f"""
        s_lshl_b32 s28, s{SGRP}, 2
        s_add_u32 s28, s28, {DB_STAGE}
        v_mov_b32 v7, s28
        s_cmp_lt_u32 s{SROLE}, 6
        s_cbranch_scc1 L_proj_sg
        L_proj_sw:
        buffer_load_dword v6, v7, s[8:11], 0 offen sc1
        s_waitcnt vmcnt(0)
        v_cmp_eq_u32 vcc, 0, v6
        s_cbranch_vccz L_proj_sg
        s_sleep 6
        """)
        tick(A)
        A("s_branch L_proj_sw\nL_proj_sg:")
    if opt.get("xtouch", 1):
        A(f"s_and_b32 s28, s{SROLE}, 3\ns_mul_i32 s28, s28, 32768\nv_lshlrev_b32 v6, 4, v0")
        for i in range(8): A(f"buffer_load_dwordx4 v[{16+4*i}:{19+4*i}], v6, s[16:19], s28 offen\ns_add_u32 s28, s28, 4096")
    for c in range(3): w_issue(c)
    for c in range(10):
        rem = min(9, c + 2) - c
        A(f"s_waitcnt vmcnt({8*rem})\ns_barrier")
        if c == opt.get("stagec", 6) and opt.get("stage", 0):
            A(f"s_or_b32 s28, s{SROLE}, s{SW}\ns_cmp_eq_u32 s28, 0\ns_cbranch_scc0 L_proj_ns2\nv_mov_b32 v6, 1\nbuffer_store_dword v6, v7, s[8:11], 0 offen sc1\nL_proj_ns2:")
        if c + 3 < 10: w_issue(c + 3)
        base = (c % 4) * 32768
        vb, boff = (52, base) if base < 65536 else (56, base - 65536)
        for k2 in range(2):
            for t in range(4):
                for u in range(2):
                    A(f"ds_read_b64_tr_b16 {r(W(t, 2*c+k2) + 2*u, 2)}, v{vb+t} offset:{boff + (32*k2 + 4*u) * 512}")
            A("s_waitcnt lgkmcnt(0)")
    A("s_barrier")
    stamp(A, opt, 1)
    A(f"""
    v_lshrrev_b32 v4, 3, v1
    v_and_b32 v3, 7, v1
    v_xor_b32 v3, v3, v4
    v_lshlrev_b32 v3, 4, v3
    v_mul_u32_u24 v4, 1280, v4
    v_add_u32 v3, v3, v4
    s_mul_i32 s30, s{SW}, 10240
    v_add_u32 v3, s30, v3
    """)
    A(f"""
    v_and_b32 v4, 7, v1
    v_lshrrev_b32 v5, 4, v1
    v_xor_b32 v5, v5, v4
    v_lshlrev_b32 v5, 4, v5
    v_lshl_add_u32 v5, v4, 7, v5
    v_bfe_u32 v4, v1, 3, 1
    v_mul_u32_u24 v4, 10240, v4
    v_add_u32 v88, v5, v4
    v_xor_b32 v89, 64, v88
    """)
    for j in range(2):
        A(f"""
        s_lshl_b32 s28, s75, 3
        s_lshl_b32 s29, s{SW}, 1
        s_add_u32 s28, s28, s29
        s_add_u32 s28, s28, {j}
        s_mul_i32 s29, s28, 43691
        s_lshr_b32 s29, s29, 18
        s_mul_i32 s31, s29, 6
        s_sub_u32 s28, s28, s31
        s_mul_i32 s29, s29, 12288
        s_lshl_b32 s28, s28, 10
        s_add_u32 s28, s28, s29
        s_add_u32 s28, s28, s74
        v_add_u32 v{6+j}, s28, v2
        v_add_u32 v{8+j}, 6144, v{6+j}
        """)
    A(f"s_lshl_b32 s28, s83, 7\ns_add_u32 s28, s28, {WS_FLAG}\nv_mov_b32 v10, s28")

    ACC = 16
    FR = 48
    PK = 80
    def acc(tt, t): return ACC + (tt * 4 + t) * 4
    def x_issue_one(i):
        A(f"s_add_u32 m0, s80, {i * 1024 - i * 128}")
        A("s_nop 0")
        A(f"buffer_load_dwordx4 v3, s[16:19], s78 offen offset:{i*128} lds")
    def rd(q, nxt):
        tt, ks = divmod(q, 20)
        base = (90 if nxt else 11) + (ks & 1)
        return f"ds_read_b128 {v(FR + 4*(q%8), 4)}, v{base} offset:{tt*20480 + (ks>>1)*1024}"
    A("s_mov_b32 s77, 0\ns_mov_b32 s78, 0\ns_mov_b32 s80, s30\ns_mov_b32 s76, 0")
    for i in range(10): x_issue_one(i)
    A("s_mov_b32 s78, 40960\ns_add_u32 s80, s30, 40960")
    for i in range(10): x_issue_one(i)
    A("s_mov_b32 s78, 81920\ns_mov_b32 s79, 81920\ns_add_u32 s80, s30, 81920\ns_mov_b32 s82, 40960")
    A("v_mov_b32 v11, v88\nv_mov_b32 v12, v89\nv_add_u32 v90, 40960, v88\nv_add_u32 v91, 40960, v89")
    wait_all_started(A, "L_proj_st", 4, 5)
    A("s_barrier")
    stamp(A, opt, 3)
    PRE = 6
    for q in range(PRE): A(rd(q, False))
    def epi(tt, vaddr0, soff):
        L = []
        for j in range(2):
            for h2 in range(2):
                t = 2 * j + h2
                L.append(f"v_cvt_pk_bf16_f32 v{PK+4*j+2*h2}, v{acc(tt,t)}, v{acc(tt,t)+1}")
                L.append(f"v_cvt_pk_bf16_f32 v{PK+4*j+2*h2+1}, v{acc(tt,t)+2}, v{acc(tt,t)+3}")
            L.append(f"buffer_store_dwordx4 {v(PK+4*j,4)}, v{vaddr0+j}, s[4:7], {soff} offen {'' if opt.get('plainst') else 'sc1'}")
        return L
    e1 = epi(1, 8, "s81")
    publish(A, 10, "1", 13, "L_proj_go", off=4)
    A("s_mov_b32 s81, 0\ns_mov_b32 s85, 0")
    A("L_proj_loop:")
    fill = {}
    def put(slot, ins): fill.setdefault(slot, []).append(ins)
    for i, ins in enumerate(e1): put(62 + i, ins)
    for i, ins in enumerate(epi(0, 6, "s76")): put(89 + i, ins)
    dma_slots = [2 + 6 * i for i in range(10)]
    for q in range(40):
        tt, ks = divmod(q, 20)
        qn = q + PRE
        if qn == 40:
            A(f"s_sub_u32 s84, s77, 2\ns_cmp_ge_u32 s77, {opt.get('strict', 12)}\ns_cbranch_scc1 L_proj_len\ns_mov_b32 s84, s77\ns_waitcnt vmcnt(2)\nL_proj_len:")
            A("s_waitcnt vmcnt(18)\ns_barrier")
        A(rd(qn % 40, qn >= 40))
        A(f"s_waitcnt lgkmcnt({PRE})")
        for t in range(4):
            c = "0" if ks == 0 else v(acc(tt, t), 4)
            A(f"v_mfma_f32_16x16x32_bf16 {v(acc(tt,t),4)}, {r(W(t,ks),4)}, {v(FR+4*(q%8),4)}, {c}")
            slot = 4 * q + t
            for ins in fill.get(slot, []): A(ins)
            if slot in dma_slots and not opt.get('nodma'): x_issue_one(dma_slots.index(slot))
            if slot == 141 and not opt.get('nopub'):
                A("s_max_u32 s85, s85, s84")
                publish(A, 10, "s85", 13, "L_proj_nopub")
            if slot == 145: A("s_mov_b32 s81, s76\ns_add_u32 s76, s76, 393216")
            if slot == 146: A("s_add_u32 s78, s78, 40960\ns_add_u32 s79, s79, 40960")
            if slot == 147: A(f"s_cmp_eq_u32 s79, {4*40960}\ns_cselect_b32 s79, 0, s79")
            if slot == 149: A(f"s_add_u32 s80, s30, s79\ns_add_u32 s82, s82, 40960")
            if slot == 150: A(f"s_cmp_eq_u32 s82, {4*40960}\ns_cselect_b32 s82, 0, s82")
            if slot == 157: A("v_mov_b32 v11, v90\nv_mov_b32 v12, v91")
            if slot == 158: A("v_add_u32 v90, s82, v88\nv_add_u32 v91, s82, v89")
    A(f"""
    s_add_u32 s77, s77, 1
    s_sub_u32 s28, s77, {opt.get('flush', 2) + 1}
    s_cmp_lt_u32 s28, {63 - opt.get('flush', 2)}
    s_cbranch_scc1 L_proj_loop
    s_nop 7
    """)
    for ins in e1: A(ins)
    A("s_mov_b32 s85, s77\ns_waitcnt vmcnt(0)\ns_barrier")
    publish(A, 10, "s77", 13, "L_proj_done")
    if opt.get("stamp"):
        A("s_cmp_eq_u32 s77, 1\ns_cbranch_scc0 L_proj_ns")
        stamp(A, opt, 4)
        A("L_proj_ns:")
    A("s_cmp_lt_u32 s77, 64\ns_cbranch_scc1 L_proj_loop\ns_waitcnt lgkmcnt(0)")
    stamp(A, opt, 2)
    A("s_branch L_xo")

def gen_pu(A, opt):
    A("L_pu:")
    if not opt.get("pu", 1):
        A("s_endpgm"); return
    A(f"s_lshl_b32 s75, s{SGRP}, 3\ns_add_u32 s75, s75, s{SROLE}\ns_sub_u32 s75, s75, 18")
    srd(A, 12, A_WO, 6144 * 1280)
    def W(t, f): return 256 + (t * 6 + f) * 4
    A(f"s_mul_i32 s30, s{SW}, 10240\ns_mul_i32 s74, s75, 245760\ns_add_u32 s74, s74, s30")
    for i in range(10):
        A(f"""
        v_add_u32 v3, {64*i}, v1
        v_mul_u32_u24 v4, 52429, v3
        v_lshrrev_b32 v4, 22, v4
        v_lshlrev_b32 v4, 1, v4
        v_add_u32 v5, v4, v4
        v_add_u32 v5, v5, v5
        """)
        A(f"v_xor_b32 v3, v3, v4\nv_lshlrev_b32 v{16+i}, 4, v3")
    A(f"""
    v_lshrrev_b32 v4, 4, v1
    v_lshlrev_b32 v4, 2, v4
    v_bfe_u32 v5, v1, 2, 2
    v_add_u32 v4, v4, v5
    v_mul_u32_u24 v4, 1280, v4
    v_and_b32 v5, 3, v1
    v_lshl_add_u32 v4, v5, 3, v4
    v_bfe_u32 v5, v1, 2, 3
    s_mul_i32 s28, s{SW}, 10
    """)
    for t in range(10):
        A(f"s_add_u32 s29, s28, {t}\nv_xor_b32 v3, s29, v5\nv_lshl_add_u32 v{26+t}, v3, 5, v4")
    def w_issue(f):
        A(f"s_add_u32 s31, s74, {f * 40960}")
        for i in range(10):
            A(f"s_add_u32 m0, s30, {(f % 4) * 40960 + i * 1024}\ns_nop 0")
            A(f"buffer_load_dwordx4 v{16+i}, s[12:15], s31 offen lds")
    for f in range(3): w_issue(f)
    for f in range(6):
        rem = min(5, f + 2) - f
        A(f"s_waitcnt vmcnt({10*rem})\ns_barrier")
        if f + 3 < 6: w_issue(f + 3)
        for t in range(10):
            A(f"v_add_u32 v{3 + t%2}, {(f % 4) * 40960}, v{26+t}")
            for u in range(2):
                A(f"ds_read_b64_tr_b16 {r(W(t, f) + 2*u, 2)}, v{3 + t%2} offset:{16*u*1280}")
            if t % 4 == 3 or t == 9: A("s_waitcnt lgkmcnt(0)")
    stamp(A, opt, 1)
    A(f"""
    s_mul_i32 s28, s75, 12288
    s_add_u32 s28, s28, {WS_VX}
    v_add_u32 v6, s28, v2
    v_add_u32 v7, 4096, v6
    v_add_u32 v8, 8192, v6
    s_lshl_b32 s28, s75, 10
    s_mul_i32 s29, s{SW}, 327680
    s_add_u32 s28, s28, s29
    v_add_u32 v9, s28, v2
    s_lshl_b32 s28, s75, 7
    s_add_u32 s28, s28, {WS_FLAG + FL_PU*128}
    v_mov_b32 v10, s28
    """)
    wait_all_started(A, "L_pu_st", 4, 5)
    A(f"""
    s_mul_i32 s28, s75, 6
    v_and_b32 v11, 1, v1
    v_mul_u32_u24 v11, 5, v11
    v_add_u32 v11, s28, v11
    v_lshrrev_b32 v11, 3, v11
    v_lshlrev_b32 v11, 7, v11
    v_add_u32 v11, {WS_FLAG + 48*128}, v11
    s_mov_b32 s77, 0
    s_mov_b32 s76, 0
    s_mov_b32 s78, {WS_UX}
    s_mov_b32 s79, 0
    """)
    VB = 32
    AC = 128
    PK = 144
    def vload(par):
        for q in range(12):
            A(f"buffer_load_dwordx4 {v(VB+48*par+4*q,4)}, v{6+q//4}, s[4:7], s76 offen offset:{(q%4)*1024} sc1")
        A("s_add_u32 s76, s76, 393216")
    def epi(t):
        a0 = AC + (t % 2) * 8; pk = PK + (t % 2) * 4
        return [f"v_cvt_pk_bf16_f32 v{pk}, v{a0}, v{a0+1}", f"v_cvt_pk_bf16_f32 v{pk+1}, v{a0+2}, v{a0+3}",
                f"v_cvt_pk_bf16_f32 v{pk+2}, v{a0+4}, v{a0+5}", f"v_cvt_pk_bf16_f32 v{pk+3}, v{a0+6}, v{a0+7}",
                f"s_add_u32 s81, s78, {t*32768}",
                f"buffer_store_dwordx4 {v(pk,4)}, v9, s[4:7], s81 offen sc1"]
    A("s_mov_b32 s80, 1")
    wait_progress(A, 79, 80, 11, 12, "L_pu_w0")
    stamp(A, opt, 3)
    vload(0)
    A("s_waitcnt vmcnt(0)")
    stamp(A, opt, 4)
    A("L_pu_loop:")
    for par in range(2):
        A(f"s_add_u32 s80, s77, 2\ns_min_u32 s80, s80, 64\ns_mov_b32 s82, 0\ns_cmp_ge_u32 s79, s80\ns_cbranch_scc0 L_pu_nopf{par}\ns_mov_b32 s82, 1")
        vload(1 - par)
        A(f"L_pu_nopf{par}:")
        A(f"buffer_load_dword v12, v11, s[4:7], 0 offen sc1")
        for t in range(10):
            a0 = AC + (t % 2) * 8
            pend = epi(t - 1) if t > 0 else []
            n = 0
            for f in range(6):
                for tt in range(2):
                    c = "0" if f == 0 else v(a0 + 4*tt, 4)
                    A(f"v_mfma_f32_16x16x32_bf16 {v(a0+4*tt,4)}, {v(VB+48*par+4*(tt*6+f),4)}, {r(W(t,f),4)}, {c}")
                    n += 1
                    if n >= 8:
                        for _ in range(2):
                            if pend: A(pend.pop(0))
        A("s_nop 7\ns_nop 3")
        for ins in epi(9): A(ins)
        A(f"""
        s_add_u32 s78, s78, 1310720
        s_mov_b32 s84, s77
        s_add_u32 s77, s77, 1
        s_cmp_gt_u32 s77, {opt.get('pustrict', 8)}
        s_cbranch_scc1 L_pu_len{par}
        s_mov_b32 s84, s77
        s_waitcnt vmcnt(0)
        L_pu_len{par}:
        s_waitcnt vmcnt(10)
        s_barrier
        """)
        publish(A, 10, "s84", 13, f"L_pu_nopub{par}")
        if opt.get("stamp") and par == 0:
            A("s_cmp_eq_u32 s77, 1\ns_cbranch_scc0 L_pu_ns")
            stamp(A, opt, 5)
            A("L_pu_ns:")
        A(f"""
        v_readlane_b32 s28, v12, 0
        v_readlane_b32 s29, v12, 1
        s_nop 3
        s_min_u32 s28, s28, s29
        s_max_u32 s79, s79, s28
        s_cmp_eq_u32 s82, 1
        s_cbranch_scc1 L_pu_have{par}
        """)
        wait_progress(A, 79, 80, 11, 12, f"L_pu_w{par+1}")
        vload(1 - par)
        A("s_waitcnt vmcnt(0)")
        A(f"L_pu_have{par}:")
    A("s_cmp_lt_u32 s77, 64\ns_cbranch_scc1 L_pu_loop")
    A("s_waitcnt vmcnt(0)\ns_barrier")
    publish(A, 10, "64", 13, "L_pu_end")
    stamp(A, opt, 2)
    A("s_waitcnt vmcnt(0)\ns_endpgm")

def stub(A, name):
    A(f"{name}:\ns_endpgm")

def build(opt):
    import kchain
    A = Asm()
    prologue(A, opt)
    gen_proj(A, opt)
    gen_pu(A, opt)
    kchain.gen_all(A, opt)
    try:
        import kssm
        kssm.gen_all(A, opt)
    except ImportError:
        stub(A, "L_ssm")
    epilogue(A)
    return wrap(A.text(), 256)

if __name__ == "__main__":
    out = sys.argv[1] if len(sys.argv) > 1 else "k.s"
    opt = {}
    for a_ in sys.argv[2:]:
        k_, v_ = a_.split("="); opt[k_] = int(v_)
    open(out, "w").write(build(opt))
```
